```python
import torch

def _softmax(x, axis=-1):
    return torch.softmax(x, dim=axis)
def _gelu(x):
    return torch.nn.functional.gelu(x, approximate="tanh")
def _silu(x):
    return torch.nn.functional.silu(x)
def _sigmoid(x):
    return torch.sigmoid(x)
def _layernorm(x, axis=-1, eps=1e-5):
    m = x.mean(dim=axis, keepdim=True)
    v = x.var(dim=axis, keepdim=True, unbiased=False)
    return (x - m) / torch.sqrt(v + eps)
def _scatter_add(tgt, idx, src, axis=0):
    return tgt.clone().index_add_(axis, idx, src)
def _segment_sum(src, seg, n):
    out = torch.zeros((n,) + src.shape[1:], dtype=src.dtype)
    return out.index_add_(0, seg, src)
def _pad(x, pw):
    flat = tuple(v for pair in reversed(pw) for v in pair)
    return torch.nn.functional.pad(x, flat)

kernel_name = 'gated_mix__mha_block__glu_gated_glu__prompt'

def setup_inputs():

    _w = (lambda a: (lambda t: t.to(torch.bfloat16) if t.is_floating_point() else t)(torch.as_tensor(a)))
    def _A_setup():
        B, S, D, H = 1, 2048, 512, 32
        return {
            "x": _w((lambda *s: torch.randn(*s, dtype=torch.bfloat16) * 0.05)(B, S, D)),
            "wqkv": _w((lambda *s: torch.randn(*s, dtype=torch.bfloat16) * 0.8)(D, 3 * D)),
            "wo": _w((lambda *s: torch.randn(*s, dtype=torch.bfloat16) * 0.1)(D, D)),
        }
    _A_in = _A_setup()

    def _B_setup():
        B, S, D, F = 1, 2048, 512, 1792
        return {
            "x": _w((lambda *s: torch.randn(*s, dtype=torch.bfloat16) * 0.05)(B, S, D)),
            "w_gate": _w((lambda *s: torch.randn(*s, dtype=torch.bfloat16) * 0.4)(D, F)),
            "w_up": _w((lambda *s: torch.randn(*s, dtype=torch.bfloat16) * 0.05)(D, F)),
            "w_down": _w((lambda *s: torch.randn(*s, dtype=torch.bfloat16) * 0.05)(F, D)),
        }
    _B_in = _B_setup()

    return {
        "A_x": _A_in["x"],
        "A_wqkv": _A_in["wqkv"],
        "A_wo": _A_in["wo"],
        "B_x": _B_in["x"],
        "B_w_gate": _B_in["w_gate"],
        "B_w_up": _B_in["w_up"],
        "B_w_down": _B_in["w_down"],
        "gate_w": _w((lambda *s: torch.randn(*s, dtype=torch.bfloat16) * 0.05)(512) * 16.0),
    }

def reference(A_x, A_wqkv, A_wo, B_x, B_w_gate, B_w_up, B_w_down, gate_w):
    def _A_ref(x, wqkv, wo):
        B, S, D = x.shape
        H = 32
        Dh = D // H
        qkv = (lambda x, *d: x.permute(*d))((x @ wqkv).reshape(B, S, 3, H, Dh), 2, 0, 3, 1, 4)
        q, k, v = qkv[0], qkv[1], qkv[2]
        scores = torch.einsum("bhqd,bhkd->bhqk", q, k) * (Dh ** -0.5)
        p = _softmax(scores, axis=-1)
        o = torch.einsum("bhqk,bhkd->bhqd", p, v)
        return (lambda x, *d: x.permute(*d))(o, 0, 2, 1, 3).reshape(B, S, D) @ wo

    def _B_ref(x, w_gate, w_up, w_down):
        g = torch.einsum("bsd,df->bsf", x, w_gate)
        u = torch.einsum("bsd,df->bsf", x, w_up)
        h = _sigmoid(g) * u
        return torch.einsum("bsf,fd->bsd", h, w_down)

    x = A_x
    g = _sigmoid((x * gate_w).sum(-1, keepdims=True))
    a = _A_ref(x, A_wqkv, A_wo)
    b = _B_ref(x, B_w_gate, B_w_up, B_w_down)
    return g * a + (1 - g) * b
```

```python
import re

TRANS = ("v_exp_f32", "v_log_f32", "v_rcp_f32", "v_rsq_f32", "v_sqrt_f32", "v_sin_f32", "v_cos_f32")


def regs_of(tok):
    tok = tok.strip()
    tok = tok.lstrip("-")
    m = re.fullmatch(r"(?:abs\(|\|)?([vsa])(\d+)(?:\)|\|)?", tok)
    if m:
        return {(m.group(1), int(m.group(2)))}
    m = re.fullmatch(r"([vsa])\[(\d+):(\d+)\]", tok)
    if m:
        return {(m.group(1), i) for i in range(int(m.group(2)), int(m.group(3)) + 1)}
    if tok in ("vcc", "vcc_lo", "vcc_hi"):
        return {("s", "vcc")}
    if tok == "m0":
        return {("s", "m0")}
    if tok in ("exec", "exec_lo", "exec_hi"):
        return {("s", "exec")}
    return set()


class Ins:
    def __init__(self, text):
        self.text = text
        t = text.split(";")[0].strip()
        parts = t.split(None, 1)
        self.op = parts[0]
        rest = parts[1] if len(parts) > 1 else ""
        ops = [o.strip() for o in rest.split(",")]
        toks = []
        for o in ops:
            toks.append(o.split()[0] if o else "")
        self.mods = rest
        self.toks = toks
        op = self.op
        self.is_mfma = op.startswith("v_mfma") or op.startswith("v_smfmac")
        self.is_valu = op.startswith("v_") and not self.is_mfma
        self.is_trans = any(op.startswith(x) for x in TRANS)
        self.is_vmem = op.startswith("buffer_") or op.startswith("global_")
        self.is_ds = op.startswith("ds_")
        self.is_salu = op.startswith("s_")
        self.w = set()
        self.r = set()
        self.srcC = set()
        self.srcAB = set()
        self.store_data = set()
        R = [regs_of(x) for x in toks]
        if self.is_mfma:
            self.w = R[0]
            self.srcAB = R[1] | R[2]
            if op.startswith("v_smfmac"):
                self.srcC = R[0]
                self.srcAB |= R[3]
            else:
                self.srcC = R[3]
            self.r = self.srcAB | self.srcC
            self.passes = 8 if "32x32" in op else 4
        elif self.is_valu:
            if op.startswith("v_cmp"):
                self.w = R[0]
                self.r = set().union(*R[1:])
            elif op.startswith("v_permlane") and "swap" in op:
                self.w = R[0] | R[1]
                self.r = R[0] | R[1]
            elif "_co_" in op:
                self.w = R[0] | R[1]
                self.r = set().union(*R[2:])
            else:
                self.w = R[0]
                self.r = set().union(*R[1:]) if len(R) > 1 else set()
                if op.startswith("v_fmac") or op.startswith("v_dot2c") or "dpp" in op or op.startswith("v_writelane"):
                    self.r |= R[0]
        elif self.is_vmem:
            if op in ("buffer_inv", "buffer_wbl2"):
                pass
            elif " lds" in (" " + rest):
                self.r = set().union(*R) | {("s", "m0")}
            elif "_load" in op:
                self.w = R[0]
                self.r = set().union(*R[1:])
            else:
                self.r = set().union(*R)
                if "x3" in op or "x4" in op:
                    self.store_data = R[0]
        elif self.is_ds:
            if "read" in op or "permute" in op or "swizzle" in op:
                self.w = R[0]
                self.r = set().union(*R[1:])
            else:
                self.r = set().union(*R)
        elif self.is_salu:
            if op.startswith("s_cmp") or op in ("s_waitcnt", "s_nop", "s_barrier", "s_sleep", "s_setprio", "s_endpgm") or op.startswith("s_cbranch") or op == "s_branch":
                self.r = set().union(*R) if R else set()
            else:
                self.w = R[0]
                self.r = set().union(*R[1:]) if len(R) > 1 else set()
        self.states = 1
        if op == "s_nop":
            self.states = int(toks[0]) + 1


def V(x):
    return {r for r in x if r[0] in "va"}


def S(x):
    return {r for r in x if r[0] == "s"}


def need(p, c):
    n = 0
    if p.is_valu:
        if c.is_mfma and V(p.w) & c.r:
            n = max(n, 2)
        if p.is_trans and c.is_valu and not c.is_trans and V(p.w) & c.r:
            n = max(n, 1)
        if c.is_vmem and S(p.w) & c.r:
            n = max(n, 5)
        if c.op.startswith("v_readfirstlane") or c.op.startswith("v_readlane"):
            if V(p.w) & c.r:
                n = max(n, 1)
        if c.is_valu and S(p.w) & c.r:
            n = max(n, 4 if (c.op.startswith("v_readlane") or c.op.startswith("v_writelane")) else 2)
        if c.op.startswith("v_cndmask") and ("s", "vcc") in p.w:
            n = max(n, 2)
        if (c.op.startswith("v_permlane") or "dpp" in c.op) and V(p.w) & c.r:
            n = max(n, 2)
        if c.is_salu and S(p.w) & c.r:
            n = max(n, 1)
    if p.is_mfma:
        full = 12 if p.passes == 8 else 8
        if c.is_mfma:
            if p.w & c.srcAB:
                n = max(n, full)
            if p.w & c.srcC and not (p.w == c.srcC and p.passes == c.passes):
                n = max(n, full - 2)
        elif c.is_valu or c.is_vmem or c.is_ds:
            if p.w & (c.r | c.w):
                n = max(n, full)
        if c.is_valu and p.srcC & c.w:
            n = max(n, 7 if p.passes == 8 else 3)
    if p.store_data and p.store_data & c.w:
        n = max(n, 2)
    if p.is_salu and ("s", "m0") in p.w and c.is_vmem and ("s", "m0") in c.r:
        n = max(n, 1)
    return n


class Asm:
    def __init__(self):
        self.out = []
        self.hist = []
        self.vm = []
        self.lg = []
        self.pads = []
        self.nlab = 0

    def raw(self, s):
        self.out.append(s)

    def c(self, s):
        self.out.append("    ; " + s)

    def label(self, name):
        self.out.append(name + ":")

    def newlab(self, base):
        self.nlab += 1
        return f"L_{base}_{self.nlab}"

    def __call__(self, text, vm=None, lg=None):
        i = Ins(text)
        dist = 0
        pad = 0
        for p in reversed(self.hist):
            n = need(p, i)
            if n > dist:
                pad = max(pad, n - dist)
            dist += p.states
            if dist >= 12:
                break
        if pad:
            self.pads.append((len(self.out), pad, text))
            nop = Ins(f"s_nop {pad-1}")
            self.out.append("    " + nop.text)
            self.hist.append(nop)
        self.out.append("    " + text)
        self.hist.append(i)
        self.hist = self.hist[-16:]
        if i.is_vmem:
            self.vm.append(vm)
        if i.is_ds:
            self.lg.append(lg)

    def fence(self):
        self("s_nop 11")

    @staticmethod
    def _count(lst, tags):
        if not isinstance(tags, (list, tuple, set)) or (isinstance(tags, tuple)):
            tags = [tags]
        idx = -1
        for k, t in enumerate(lst):
            if t in tags:
                idx = k
        if idx < 0:
            return None
        return len(lst) - 1 - idx

    def wait(self, vm=None, lg=None, vm0=False, lg0=False):
        parts = []
        if vm0:
            parts.append("vmcnt(0)")
            self.vm = []
        elif vm is not None:
            n = self._count(self.vm, vm)
            if n is not None:
                n = min(n, 63)
                parts.append(f"vmcnt({n})")
                self.vm = self.vm[len(self.vm) - n:] if n else []
        if lg0:
            parts.append("lgkmcnt(0)")
            self.lg = []
        elif lg is not None:
            n = self._count(self.lg, lg)
            if n is not None:
                n = min(n, 15)
                parts.append(f"lgkmcnt({n})")
                self.lg = self.lg[len(self.lg) - n:] if n else []
        if parts:
            self("s_waitcnt " + " ".join(parts))

    def snapshot(self):
        return (list(self.vm), list(self.lg), list(self.hist))

    def restore(self, s):
        self.vm, self.lg, self.hist = list(s[0]), list(s[1]), list(s[2])

    def text(self):
        return "\n".join(self.out) + "\n"
```

```python
import sys
from asmlib import Asm

NAME = "gated_mix__mha_block__glu_gated_glu__prompt"
F1, F2, F3 = 0, 2048, 4096
GOFF = 16384
DIAG = 32768
QF, KV, OF, HF = 1 << 20, 3 << 20, 7 << 20, 9 << 20
WSZ = 16 << 20
SPIN = 200000

X, WQKV, U1A, U1B, WG, WU, WS, WD, WO, OUT, DBG, GW = [f"s[{4+4*i}:{7+4*i}]" for i in range(12)]
sW, sW1K, sXCD, sJ, sMT, sNT, sR, sNQ, sKC0, sSTR = [f"s{i}" for i in range(52, 62)]
sT0, sT1 = "s62", "s63"
sX0, sX1, sK, sU1, sU2, sKC, sCNT, sTB, sCH, sTOKB = [f"s{i}" for i in range(86, 96)]
sMASK = "s[96:97]"
sHEAD, sQB, sKVB, sT2, sT3, sHB, sOFLAG, sTBD, sKQ, sCT, sP1, sP2, sQ0 = [f"s{i}" for i in range(64, 77)]

vL = "v0"
vST = 127
LOG2E = 1.4426950408889634


def fb(x):
    import struct
    return hex(struct.unpack("<I", struct.pack("<f", x))[0])


def vr(a, n):
    return f"v[{a}:{a+n-1}]"


def gen(diag=False, opts=None):
    o = dict(force_slow=False)
    o.update(opts or {})
    a = Asm()
    nst = [0]

    def stamp(name):
        if not diag:
            return
        a("s_memrealtime s[98:99]")
        a.wait(lg0=True)
        a(f"v_writelane_b32 v{vST}, s98, {nst[0]}")
        STAMPS.append(name)
        nst[0] += 1

    STAMPS.clear()

    def mfma(d, A, B, c=None):
        a(f"v_mfma_f32_32x32x16_bf16 {vr(d,16)}, {vr(A,4)}, {vr(B,4)}, {'0' if c is None else vr(c,16)}")

    def poll(vd, va, srd, tag, soff="0"):
        ok = a.newlab("ok")
        lp = a.newlab("spin")
        a.wait(vm=tag)
        a(f"v_cmp_ne_u32 vcc, 0, v{vd}")
        a("s_cmp_eq_u64 vcc, -1")
        a(f"s_cbranch_scc1 {ok}")
        snap = a.snapshot()
        a(f"s_mov_b32 {sCNT}, {SPIN}")
        a.label(lp)
        a(f"buffer_load_dword v{vd}, v{va}, {srd}, {soff} offen sc1")
        a("s_waitcnt vmcnt(0)")
        a(f"v_cmp_ne_u32 vcc, 0, v{vd}")
        a(f"s_sub_u32 {sCNT}, {sCNT}, 1")
        a(f"s_cbranch_scc1 {ok}")
        a("s_cmp_eq_u64 vcc, -1")
        a(f"s_cbranch_scc0 {lp}")
        a.label(ok)
        a.restore(snap)

    def flag_store(vtmp, soff, srd=WS):
        snap = a.snapshot()
        a(f"v_mov_b32 v{vtmp}, 1")
        a(f"v_mov_b32 v{vtmp+1}, 0")
        a("s_mov_b64 exec, 1")
        a(f"buffer_store_dword v{vtmp}, v{vtmp+1}, {srd}, {soff} offen sc1")
        a("s_mov_b64 exec, -1")
        return snap

    a.label(NAME + "_kernel")
    a("s_cmp_ge_u32 s2, 256")
    a("s_cbranch_scc1 L_end")
    a("s_load_dwordx16 s[64:79], s[0:1], 0")
    a("s_load_dwordx4 s[80:83], s[0:1], 64")
    a("s_load_dwordx2 s[84:85], s[0:1], 80")
    if diag:
        a(f"v_mov_b32 v{vST}, 0")
        a("s_memrealtime s[100:101]")
    a("v_lshrrev_b32 v1, 6, v0")
    a("v_and_b32 v0, 63, v0")
    a(f"v_readfirstlane_b32 {sW}, v1")
    a(f"s_and_b32 {sXCD}, s2, 7")
    a(f"s_lshr_b32 {sJ}, s2, 3")
    a(f"s_lshr_b32 {sNQ}, {sXCD}, 1")
    a(f"s_lshr_b32 {sR}, {sJ}, 3")
    a(f"s_and_b32 {sT0}, {sJ}, 7")
    a(f"s_and_b32 {sT1}, {sXCD}, 1")
    a(f"s_lshl_b32 {sT1}, {sT1}, 3")
    a(f"s_add_u32 {sMT}, {sT0}, {sT1}")
    a(f"s_lshl_b32 {sNT}, {sNQ}, 2")
    a(f"s_add_u32 {sNT}, {sNT}, {sR}")
    a(f"s_lshl_b32 {sKC0}, {sR}, 1")
    a(f"s_add_u32 {sKC0}, {sKC0}, {sT0}")
    a(f"s_and_b32 {sKC0}, {sKC0}, 7")
    a(f"s_lshl_b32 {sW1K}, {sW}, 10")
    a(f"s_and_b32 {sTB}, {sW}, 3")
    a(f"s_lshr_b32 {sCH}, {sW}, 2")
    a(f"s_lshl_b32 {sTOKB}, {sMT}, 2")
    a(f"s_add_u32 {sTOKB}, {sTOKB}, {sTB}")
    a("s_mov_b32 s96, 0x0000ffff")
    a("s_mov_b32 s97, 0x0000ffff")
    a("v_lshrrev_b32 v104, 3, v0")
    a("v_and_b32 v105, 7, v0")
    a("v_and_b32 v106, 2, v104")
    a("v_lshlrev_b32 v106, 1, v106")
    a("v_xor_b32 v106, v105, v106")
    a("v_lshlrev_b32 v106, 4, v106")
    a(f"s_lshl_b32 {sT0}, {sW}, 3")
    a(f"v_add_u32 v104, {sT0}, v104")
    a("v_bfe_u32 v107, v104, 1, 3")
    a("v_xor_b32 v107, v105, v107")
    a("v_lshlrev_b32 v107, 4, v107")
    a("v_lshl_add_u32 v1, v104, 10, v107")
    a(f"s_lshl_b32 {sT0}, {sMT}, 17")
    a(f"v_add_u32 v1, {sT0}, v1")
    a("v_mul_u32_u24 v2, 3072, v104")
    a(f"s_lshl_b32 {sT0}, {sNT}, 7")
    a(f"s_add_u32 {sT0}, {sT0}, 1024")
    a(f"v_add3_u32 v2, v2, {sT0}, v106")
    a(f"s_mul_i32 {sT0}, {sNQ}, 7")
    a(f"s_lshl_b32 {sT1}, {sR}, 1")
    a(f"s_add_u32 s3, {sT0}, {sT1}")
    a(f"s_cmp_lt_u32 {sR}, 3")
    a(f"s_movk_i32 {sSTR}, 3072")
    a(f"s_cselect_b32 {sSTR}, 3584, {sSTR}")
    a(f"s_cselect_b32 {sT1}, 1, 0")
    a(f"s_add_u32 {sU2}, s3, {sT1}")
    a(f"s_mov_b32 {sU1}, s3")
    a(f"s_lshl_b32 {sT0}, s3, 7")
    a(f"s_lshl_b32 {sT1}, {sNQ}, 8")
    a(f"s_cmp_lt_u32 {sR}, 3")
    a(f"s_cselect_b32 {sT0}, {sT0}, {sT1}")
    a(f"s_cselect_b32 {sT1}, 0, 128")
    a(f"s_add_u32 {sT1}, {sT1}, {sT0}")
    a(f"v_mul_u32_u24 v107, {sSTR}, v104")
    a("v_xor_b32 v108, 32, v106")
    a(f"v_add3_u32 v3, v107, {sT0}, v106")
    a(f"v_add3_u32 v4, v107, {sT1}, v108")
    a("v_mul_u32_u24 v107, 3584, v104")
    a(f"s_lshl_b32 {sT0}, {sU2}, 7")
    a(f"v_add3_u32 v5, v107, {sT0}, v106")
    a(f"v_add3_u32 v6, v107, {sT0}, v108")
    vL16 = 126
    a(f"v_lshlrev_b32 v{vL16}, 4, v0")
    a("s_waitcnt lgkmcnt(0)")

    def srd(base, p, size):
        a(f"s_mov_b32 s{base}, s{p}")
        a(f"s_mov_b32 s{base+1}, s{p+1}")
        a(f"s_mov_b32 s{base+2}, {size}")
        a(f"s_mov_b32 s{base+3}, 0x20000")

    srd(4, 64, 2048 * 1024)
    srd(8, 66, 512 * 3072)
    a(f"s_cmp_lt_u32 {sR}, 3")
    a("s_cselect_b32 s12, s72, s66")
    a("s_cselect_b32 s13, s73, s67")
    a(f"s_cselect_b32 s14, {512*3584}, s10")
    a("s_mov_b32 s15, 0x20000")
    a("s_cselect_b32 s16, s74, s66")
    a("s_cselect_b32 s17, s75, s67")
    a("s_mov_b32 s18, s14")
    a("s_mov_b32 s19, 0x20000")
    srd(48, 78, 1024)
    srd(28, 84, WSZ)

    XR, KR, DR = 0, 65536, 98304

    def chunk_scalars(c):
        a(f"s_add_u32 {sKC}, {sKC0}, {c}")
        a(f"s_and_b32 {sKC}, {sKC}, 7")

    def dma(va, srd_, soff, ldsoff, tag, pre=None, sc1=False):
        a(f"s_add_u32 m0, {sW1K}, {ldsoff}")
        if pre:
            a(pre)
        a(f"buffer_load_dwordx4 v{va}, {srd_}, {soff} offen {'sc1 ' if sc1 else ''}lds", vm=tag)

    def p1_dmas(c):
        sl = c & 3
        t = ("c", c)

        def d0():
            chunk_scalars(c)
            dma(1, X, sX0, XR + sl * 16384, t, pre=f"s_lshl_b32 {sX0}, {sKC}, 7")

        def d1():
            dma(1, X, sX1, XR + sl * 16384 + 8192, t, pre=f"s_add_u32 {sX1}, {sX0}, 65536")

        def d2():
            dma(2, WQKV, sK, KR + sl * 8192, t, pre=f"s_mul_i32 {sK}, {sKC}, {64*3072}")

        def d3():
            a(f"s_lshl_b32 {sT0}, {sKC}, 6")
            dma(3, U1A, sU1, DR + sl * 16384, t, pre=f"s_mul_i32 {sU1}, {sT0}, {sSTR}")

        def d4():
            dma(4, U1B, sU1, DR + sl * 16384 + 8192, t)

        return [d0, d1, d2, d3, d4]

    def u2_loc(u):
        return (DR if u % 2 == 0 else XR) + (u >> 1) * 16384

    def p2_dmas(u):
        t = ("u", u)

        def d0():
            chunk_scalars(u)
            dma(5, WG, sU2, u2_loc(u), t, pre=f"s_mul_i32 {sU2}, {sKC}, {64*3584}")

        def d1():
            dma(6, WU, sU2, u2_loc(u) + 8192, t)

        return [d0, d1]

    a(f"s_mov_b32 s3, {sU1}")
    a(f"s_mov_b32 {sCNT}, {sU2}")
    for d in p1_dmas(0):
        d()
    a("s_cmp_lg_u32 s2, 0")
    a("s_cbranch_scc1 L_noclr")
    snap = a.snapshot()
    for i in range(4):
        a(f"v_mov_b32 v{112+i}, 0")
    a(f"s_lshl_b32 {sT0}, {sW}, 11")
    a(f"buffer_store_dwordx4 v[112:115], v{vL16}, {WS}, {sT0} offen sc1")
    a(f"buffer_store_dwordx4 v[112:115], v{vL16}, {WS}, {sT0} offen offset:1024 sc1")
    a("s_nop 1")
    a.label("L_noclr")
    a.restore(snap)
    a(f"s_lshl_b32 {sT0}, {sMT}, 7")
    a(f"s_lshl_b32 {sT1}, {sNT}, 3")
    a(f"s_add_u32 {sT0}, {sT0}, {sT1}")
    a(f"s_add_u32 {sT0}, {sT0}, {sW}")
    a(f"s_lshl_b32 {sT1}, {sT0}, 10")
    a(f"buffer_load_dwordx4 v[104:107], v{vL16}, {X}, {sT1} offen", vm="gate")
    a(f"buffer_load_dwordx4 v[108:111], v{vL16}, {GW}, 0 offen", vm="gate")
    srd(20, 72, 512 * 3584)
    srd(24, 74, 512 * 3584)
    srd(32, 76, 1792 * 1024)
    srd(36, 68, 512 * 1024)
    srd(40, 80, 2048 * 1024)
    srd(44, 82, 256)
    a(f"s_mov_b32 {sP1}, s3")
    a(f"s_mov_b32 {sP2}, {sCNT}")
    a(f"s_lshl_b32 {sT3}, {sT0}, 2")
    a(f"s_add_u32 {sT3}, {sT3}, {GOFF}")
    for d in p1_dmas(1):
        d()
    if diag:
        a(f"v_writelane_b32 v{vST}, s100, 0")
        STAMPS.append("start")
        nst[0] = 1
    stamp("issued01")
    a("v_and_b32 v112, 31, v0")
    a("v_lshrrev_b32 v113, 5, v0")
    a("v_bfe_u32 v114, v112, 1, 3")
    a("v_xor_b32 v114, v114, v113")
    a("v_lshlrev_b32 v114, 4, v114")
    a(f"s_lshl_b32 {sT0}, {sTB}, 12")
    a("v_lshl_add_u32 v114, v112, 7, v114")
    a(f"v_add_u32 v7, {sT0}, v114")
    for s in range(1, 4):
        a(f"v_xor_b32 v{7+s}, {s<<5}, v7")
    a("v_bfe_u32 v114, v0, 2, 2")
    a("v_bfe_u32 v115, v0, 4, 1")
    a("v_and_b32 v116, 3, v0")
    a("v_lshl_add_u32 v117, v113, 3, v114")
    a("v_lshlrev_b32 v117, 7, v117")
    a("v_lshl_add_u32 v117, v116, 3, v117")
    a("v_and_b32 v118, 2, v114")
    a("v_xor_b32 v118, v118, v115")
    a(f"s_lshl_b32 {sT0}, {sCH}, 1")
    a(f"v_xor_b32 v118, {sT0}, v118")
    a("v_lshl_add_u32 v119, v118, 5, v117")
    a(f"v_add_u32 v11, {KR}, v119")
    a("v_lshl_add_u32 v14, v115, 13, v119")
    a("v_xor_b32 v15, 32, v14")
    a(f"v_add_u32 v12, {DR}, v14")
    a(f"v_add_u32 v13, {DR}, v15")
    for d in p1_dmas(2):
        d()
    a.wait(vm="gate")
    a("v_mov_b32 v112, 0")
    for i in range(4):
        a(f"v_lshlrev_b32 v113, 16, v{104+i}")
        a(f"v_lshlrev_b32 v114, 16, v{108+i}")
        a(f"v_and_b32 v115, 0xffff0000, v{104+i}")
        a(f"v_and_b32 v116, 0xffff0000, v{108+i}")
        a("v_fmac_f32 v112, v113, v114")
        a("v_fmac_f32 v112, v115, v116")
    for m in ("row_shr:1 row_mask:0xf", "row_shr:2 row_mask:0xf", "row_shr:4 row_mask:0xf", "row_shr:8 row_mask:0xf",
              "row_bcast:15 row_mask:0xa", "row_bcast:31 row_mask:0xc"):
        a(f"v_add_f32_dpp v112, v112, v112 {m} bank_mask:0xf")
    a(f"v_mul_f32 v112, {fb(-LOG2E)}, v112")
    a("v_exp_f32 v112, v112")
    a("v_add_f32 v112, 1.0, v112")
    a("v_rcp_f32 v112, v112")
    a("v_mov_b32 v113, 0")
    a("s_mov_b32 exec_lo, 0")
    a("s_mov_b32 exec_hi, 0x80000000")
    a(f"buffer_store_dword v112, v113, {WS}, {sT3} offen sc1", vm="gst")
    a("s_mov_b64 exec, -1")

    A0, A1, A2, A3, WF, XF = 16, 32, 48, 64, 80, 128

    def p1_reads(g):
        c, s = g >> 2, g & 3
        sl = c & 3
        wb = WF + 12 * (g & 1)
        r = []
        r.append((f"ds_read_b128 {vr(XF+4*g,4)}, v{7+s} offset:{XR+sl*16384}", ("x", g)))
        for jj in range(2):
            r.append((f"ds_read_b64_tr_b16 {vr(wb+2*jj,2)}, v11 offset:{sl*8192+s*2048+jj*512}", ("w0", g)))
        for b in range(2):
            for jj in range(2):
                r.append((f"ds_read_b64_tr_b16 {vr(wb+4+4*b+2*jj,2)}, v{12+b} offset:{sl*16384+s*2048+jj*512}", (f"w{1+b}", g)))
        return r

    def p2_reads(g):
        u, s = g >> 2, g & 3
        wb = WF + 12 * (g & 1)
        r = []
        for b in range(2):
            for jj in range(2):
                va = (12 if u % 2 == 0 else 14) + b
                r.append((f"ds_read_b64_tr_b16 {vr(wb+4+4*b+2*jj,2)}, v{va} offset:{(u>>1)*16384+s*2048+jj*512}", (f"y{1+b}", g)))
        return r

    def emit_reads(rs):
        for t, tag in rs:
            a(t, lg=tag)

    a.wait(vm=("c", 0))
    a("s_barrier")
    stamp("c0ready")
    a(f"s_or_b32 {sT0}, s2, {sW}")
    a("s_cbranch_scc1 L_nogo")
    snap = flag_store(112, "0", srd=DBG)
    a.label("L_nogo")
    a.restore(snap)
    emit_reads(p1_reads(0))

    def cvt8(dst, src):
        for i in range(4):
            a(f"v_cvt_pk_bf16_f32 v{dst+i}, v{src+2*i}, v{src+2*i+1}")

    def pass1(isV):
        pend = list(p1_dmas(3))
        for g in range(32):
            c, s = g >> 2, g & 3
            wb = WF + 12 * (g & 1)
            if s == 3:
                if c < 7:
                    a.wait(vm=("c", c + 1))
                else:
                    a.wait(vm=("u", 1))
                a("s_barrier")
                assert not pend
                if 1 <= c <= 4:
                    pend = list(p1_dmas(c + 3))
                elif c >= 5:
                    pend = p2_dmas(2 * (c - 5)) + p2_dmas(2 * (c - 5) + 1)
                if c == 2:
                    a(f"s_mul_i32 {sT0}, {sKC0}, {64*3584}")
                    a(f"buffer_load_dword v125, v5, {WG}, {sT0} offen")
                    a(f"buffer_load_dword v125, v6, {WU}, {sT0} offen")
                if c == 7:
                    a("v_mov_b32 v123, 0")
                    a(f"buffer_load_dword v122, v123, {DBG}, 0 offen sc1", vm="go")
            nxt = p1_reads(g + 1) if g < 31 else p2_reads(0)
            parts = [nxt[:3], nxt[3:5], nxt[5:]] if g < 31 else [nxt[:2], nxt[2:], []]
            for b in range(3):
                a.wait(lg=(f"w{b}", g))
                acc = [A0, A1, A2][b]
                wf = wb + 4 * b
                if b == 0 and isV:
                    mfma(acc, XF + 4 * g, wf, None if g == 0 else acc)
                else:
                    mfma(acc, wf, XF + 4 * g, None if g == 0 else acc)
                emit_reads(parts[b])
                if pend and (b != 1 or g == 31 or g < 3):
                    pend.pop(0)()
        while pend:
            pend.pop(0)()
        cvt8(104, A0)
        cvt8(108, A0 + 8)
        a(f"s_lshl_b32 {sT1}, {sTOKB}, 11")
        if not isV:
            a(f"s_lshl_b32 {sT0}, {sNT}, 1")
            a(f"s_add_u32 {sT0}, {sT0}, {sCH}")
            a(f"s_lshl_b32 {sT0}, {sT0}, 18")
            a(f"s_add_u32 {sT0}, {sT0}, {sT1}")
            a(f"s_add_u32 {sT0}, {sT0}, {KV}")
            a(f"s_add_u32 {sT1}, {sT0}, 131072")
            a(f"buffer_store_dwordx4 v[104:107], v{vL16}, {WS}, {sT0} offen sc1", vm="st1")
            a(f"buffer_store_dwordx4 v[108:111], v{vL16}, {WS}, {sT1} offen sc1", vm="st1")
        else:
            a("v_bfe_u32 v112, v0, 4, 1")
            a("v_lshrrev_b32 v113, 5, v0")
            a("v_and_b32 v114, 15, v0")
            a("v_lshlrev_b32 v112, 17, v112")
            a("v_lshl_add_u32 v112, v113, 8, v112")
            a("v_lshl_add_u32 v112, v114, 4, v112")
            a(f"s_lshl_b32 {sT0}, {sNT}, 1")
            a(f"s_add_u32 {sT0}, {sT0}, {sCH}")
            a(f"s_lshl_b32 {sT0}, {sT0}, 18")
            a(f"s_add_u32 {sT0}, {sT0}, {sT1}")
            a(f"s_sub_u32 {sT0}, {sT0}, {32*131072-KV}")
            a(f"buffer_store_dwordx4 v[104:107], v112, {WS}, {sT0} offen offset:1024 sc1", vm="st1")
            a(f"buffer_store_dwordx4 v[108:111], v112, {WS}, {sT0} offen offset:1536 sc1", vm="st1")

    a(f"s_cmp_ge_u32 {sNT}, 8")
    a("s_cbranch_scc1 L_p1v")
    snap = a.snapshot()
    pass1(False)
    a("s_branch L_p1done")
    a.label("L_p1v")
    a.restore(snap)
    pass1(True)
    a.label("L_p1done")
    a("s_nop 1")
    stamp("pass1")

    def gu_epilogue(accs, sP, tag):
        a(f"s_mul_i32 {sT0}, {sTOKB}, 114688")
        a(f"s_lshl_b32 {sT1}, {sP}, 1")
        a(f"s_add_u32 {sT1}, {sT1}, {sCH}")
        a(f"s_lshl_b32 {sT1}, {sT1}, 11")
        a(f"s_add_u32 {sT0}, {sT0}, {sT1}")
        a(f"s_add_u32 {sT0}, {sT0}, {HF}")
        for b, acc in enumerate(accs):
            for i in range(8):
                a(f"v_mul_f32 v{acc+i}, {fb(-LOG2E)}, v{acc+i}")
            for i in range(8):
                a(f"v_exp_f32 v{acc+i}, v{acc+i}")
            for i in range(8):
                a(f"v_add_f32 v{acc+i}, 1.0, v{acc+i}")
            for i in range(8):
                a(f"v_rcp_f32 v{acc+i}, v{acc+i}")
            for i in range(8):
                a(f"v_mul_f32 v{acc+i}, v{acc+i}, v{acc+8+i}")
            cvt8(acc + 8, acc)
            a(f"buffer_store_dwordx4 {vr(acc+8,4)}, v{vL16}, {WS}, {sT0} offen offset:{b*1024} sc1", vm=tag)

    a(f"s_cmp_eq_u32 {sR}, 3")
    a("s_cbranch_scc1 L_qepi")
    snap = a.snapshot()
    gu_epilogue([A1, A2], sP1, "st1")
    snap2 = a.snapshot()
    a("s_branch L_epi1done")
    a.label("L_qepi")
    a.restore(snap)
    a(f"s_lshl_b32 {sT0}, {sNQ}, 2")
    a(f"s_add_u32 {sT0}, {sT0}, {sCH}")
    a(f"s_lshl_b32 {sT0}, {sT0}, 17")
    a(f"s_lshl_b32 {sT1}, {sTOKB}, 10")
    a(f"s_add_u32 {sT0}, {sT0}, {sT1}")
    a(f"s_add_u32 {sT0}, {sT0}, {QF}")
    for b, acc in enumerate([A1, A2]):
        for i in range(16):
            a(f"v_mul_f32 v{acc+i}, {fb(LOG2E*0.25)}, v{acc+i}")
        for hh in range(2):
            dst = 104 + 4 * (2 * b + hh)
            cvt8(dst, acc + 8 * hh)
            a(f"s_add_u32 {sT1}, {sT0}, {(4*hh+b)*65536}")
            a(f"buffer_store_dwordx4 {vr(dst,4)}, v{vL16}, {WS}, {sT1} offen sc1", vm="st1")
    a.label("L_epi1done")
    a.restore(snap2)
    a("s_nop 1")
    stamp("epi1")

    a(f"s_and_b32 {sT0}, {sJ}, 3")
    a(f"s_lshl_b32 {sHEAD}, {sXCD}, 2")
    a(f"s_add_u32 {sHEAD}, {sHEAD}, {sT0}")
    a(f"s_lshr_b32 {sQB}, {sJ}, 2")
    a(f"s_lshl_b32 {sKVB}, {sHEAD}, 17")
    a(f"s_add_u32 {sKVB}, {sKVB}, {KV}")
    a("v_and_b32 v112, 15, v0")
    a("v_bfe_u32 v113, v0, 4, 1")
    a("v_lshlrev_b32 v112, 2, v112")
    a("v_lshl_add_u32 v112, v113, 10, v112")
    a(f"s_lshl_b32 {sT0}, {sXCD}, 7")
    a(f"v_add_u32 v112, {sT0}, v112")
    a(f"s_lshl_b32 {sT0}, {sNQ}, 9")
    a(f"s_add_u32 {sT0}, {sT0}, 384")
    a(f"s_lshl_b32 {sT1}, {sQB}, 3")
    a(f"s_add_u32 {sT0}, {sT0}, {sT1}")
    a("v_and_b32 v113, 1, v0")
    a(f"v_lshl_add_u32 v113, v113, 2, {sT0}")
    a("v_cmp_gt_u32 vcc, 32, v0")
    a("v_cndmask_b32 v124, v113, v112, vcc")

    pend = []
    for g in range(32):
        u, s = g >> 2, g & 3
        wb = WF + 12 * (g & 1)
        if g == 3:
            a.wait(vm=("u", 5))
            a("s_barrier")
            pend = p2_dmas(6) + p2_dmas(7)
        if g == 11:
            a.wait(vm="st1")
            a("s_barrier")
            a(f"s_cmp_lg_u32 {sW}, 0")
            a("s_cbranch_scc1 L_nof1")
            snap = a.snapshot()
            poll(122, 123, DBG, "go")
            a(f"s_lshl_b32 {sT0}, {sNT}, 7")
            a(f"s_lshl_b32 {sT1}, {sMT}, 2")
            a(f"s_add_u32 {sT0}, {sT0}, {sT1}")
            flag_store(112, sT0)
            a.label("L_nof1")
            a.restore(snap)
        if g == 23:
            a.wait(vm=("u", 7))
            a("s_barrier")
        if g == 28:
            a(f"s_cmp_lg_u32 {sW}, 0")
            a("s_cbranch_scc1 L_nop1")
            snap = a.snapshot()
            a(f"buffer_load_dword v122, v124, {WS}, 0 offen sc1")
            a.label("L_nop1")
            a.restore(snap)
        nxt = p2_reads(g + 1) if g < 31 else []
        for b in range(2):
            a.wait(lg=(f"y{1+b}", g))
            acc = [A0, A3][b]
            mfma(acc, wb + 4 + 4 * b, XF + 4 * g, None if g == 0 else acc)
            emit_reads(nxt[2 * b:2 * b + 2])
            if pend and b == 0:
                pend.pop(0)()
    stamp("pass2")
    a(f"s_cmp_lg_u32 {sW}, 0")
    a("s_cbranch_scc1 L_nop2")
    snap = a.snapshot()
    a.vm.append("f1")
    poll(122, 124, WS, "f1")
    a.label("L_nop2")
    a.restore(snap)
    a("s_barrier")
    stamp("f1ok")

    S0, S1, O0, O1, Q0, Q1, KF, VF = 16, 32, 48, 64, 80, 84, 88, 96
    vIDX, vAK, vAV = 112, 113, 114
    HR = 144

    def kv_dma(t):
        a(f"s_add_u32 {sT0}, {sKVB}, {sW1K}") if t == 0 else None
        if t == 0:
            a(f"s_mov_b32 {sKVB}, {sT0}")
        dma(vL16, WS, sT1, t * 8192, ("kv", t), pre=f"s_add_u32 {sT1}, {sKVB}, {t*8192}", sc1=True)

    a(f"s_lshl_b32 {sQ0}, {sQB}, 2")
    a(f"s_add_u32 {sQ0}, {sQ0}, {sTB}")
    a(f"s_lshl_b32 {sQ0}, {sQ0}, 1")
    a(f"s_add_u32 {sQ0}, {sQ0}, {sCH}")
    kv_dma(0)
    a(f"s_lshl_b32 {sT0}, {sHEAD}, 6")
    a(f"s_add_u32 {sT0}, {sT0}, {sQ0}")
    a(f"s_lshl_b32 {sT0}, {sT0}, 10")
    a(f"s_add_u32 {sT0}, {sT0}, {QF}")
    a(f"s_xor_b32 {sT2}, {sT0}, 1024")
    a(f"buffer_load_dwordx4 {vr(Q0,4)}, v{vL16}, {WS}, {sT0} offen sc1", vm="q")
    a(f"buffer_load_dwordx4 {vr(Q1,4)}, v{vL16}, {WS}, {sT2} offen sc1", vm="q")
    for t in range(1, 8):
        kv_dma(t)
    gu_epilogue([A0, A3], sP2, "st2")
    stamp("epi2")
    a(f"s_and_b32 {sTBD}, {sJ}, 3")
    a(f"s_lshl_b32 {sT0}, {sXCD}, 2")
    a(f"s_add_u32 {sTBD}, {sTBD}, {sT0}")
    a(f"s_lshr_b32 {sT2}, {sTBD}, 1")
    a(f"s_lshl_b32 {sTBD}, {sTBD}, 1")
    a(f"s_and_b32 {sT0}, {sW}, 1")
    a(f"s_add_u32 {sTBD}, {sTBD}, {sT0}")
    a(f"s_lshr_b32 {sKQ}, {sW}, 1")
    a(f"s_lshr_b32 {sCT}, {sJ}, 2")
    a(f"s_mul_i32 {sHB}, {sTBD}, 114688")
    a(f"s_mul_i32 {sT0}, {sKQ}, {28*1024}")
    a(f"s_add_u32 {sHB}, {sHB}, {sT0}")
    a(f"s_add_u32 {sHB}, {sHB}, {HF}")
    vF2, vWD, vPF, vG, vGA = 115, 116, 117, 118, 119
    a(f"v_and_b32 v{vF2}, 15, v0")
    a(f"s_lshl_b32 {sT2}, {sT2}, 7")
    a(f"s_add_u32 {sT2}, {sT2}, {F2}")
    a(f"v_lshl_add_u32 v{vF2}, v{vF2}, 2, {sT2}")
    a("v_lshrrev_b32 v120, 3, v0")
    a("v_and_b32 v121, 7, v0")
    a("v_and_b32 v122, 2, v120")
    a("v_lshlrev_b32 v122, 1, v122")
    a("v_xor_b32 v121, v121, v122")
    a("v_lshlrev_b32 v121, 4, v121")
    a("v_lshl_add_u32 v120, v120, 10, v121")
    a(f"s_lshl_b32 {sT0}, {sW}, 13")
    a(f"s_lshl_b32 {sT1}, {sCT}, 7")
    a(f"s_add_u32 {sT0}, {sT0}, {sT1}")
    a(f"v_add_u32 v{vWD}, {sT0}, v120")
    a(f"v_lshl_add_u32 v{vPF}, v0, 10, {sT1}")
    a(f"v_and_b32 v{vGA}, 31, v0")
    a(f"s_lshl_b32 {sT0}, {sTBD}, 7")
    a(f"s_add_u32 {sT0}, {sT0}, {GOFF}")
    a(f"v_lshl_add_u32 v{vGA}, v{vGA}, 2, {sT0}")
    a(f"v_mov_b32 v{vIDX}, 0xdddddddd")
    a("v_and_b32 v120, 0x13, v0")
    a("v_bfe_u32 v121, v0, 2, 1")
    a("v_lshl_or_b32 v120, v121, 3, v120")
    a("v_bfe_u32 v121, v0, 3, 1")
    a("v_lshl_or_b32 v120, v121, 2, v120")
    a("v_lshrrev_b32 v121, 5, v0")
    a("v_lshlrev_b32 v120, 4, v120")
    a("v_lshl_add_u32 v120, v121, 9, v120")
    a(f"s_lshl_b32 {sT0}, {sCH}, 11")
    a(f"v_add_u32 v{vAK}, {sT0}, v120")
    a("v_and_b32 v120, 15, v0")
    a("v_lshlrev_b32 v120, 4, v120")
    a("v_lshl_add_u32 v120, v121, 8, v120")
    a(f"v_add_u32 v{vAV}, {sT0}, v120")
    for i in range(16):
        a(f"v_mov_b32 v{VF+i}, 0x3f803f80")
    for i in range(32):
        a(f"v_mov_b32 v{O0+i}, 0")

    DSLOT = [4, 0, 1, 2, 3, 4, 0, 1, 2]

    def wd_dmas(e):
        r = []
        for q in range(4):
            def d(q=q):
                row = 448 * q + 64 * e if e < 7 else 128 * q + 64 * (e - 7)
                dma(vWD, WD if e < 7 else WO, sT1, DSLOT[e] * 32768 + q * 8192, ("e", e), pre=f"s_mov_b32 {sT1}, {row*1024}")
            r.append(d)
        return r

    def h_load(i):
        def d():
            if i % 4 == 0 and i:
                a(f"s_add_u32 {sHB}, {sHB}, 4096")
            a(f"buffer_load_dwordx4 {vr(HR+4*i,4)}, v{vL16}, {WS}, {sHB} offen offset:{(i%4)*1024} sc1", vm=("h", i))
        return d

    def l2_prefetch():
        lab = a.newlab("nopf")
        lab2 = a.newlab("pfo")
        snap = a.snapshot()
        a(f"s_cmp_ge_u32 {sW}, 5")
        a(f"s_cbranch_scc1 {lab}")
        a(f"s_and_b32 {sT0}, {sJ}, 3")
        a(f"s_mul_i32 {sT0}, {sT0}, 5")
        a(f"s_add_u32 {sT0}, {sT0}, {sW}")
        a(f"s_cmp_ge_u32 {sT0}, 12")
        a(f"s_cbranch_scc1 {lab2}")
        a(f"s_mul_i32 {sT1}, {sT0}, 43")
        a(f"s_lshr_b32 {sT1}, {sT1}, 7")
        a(f"s_lshl_b32 {sT1}, {sT1}, 2")
        a(f"s_add_u32 {sT0}, {sT0}, {sT1}")
        a(f"s_add_u32 {sT0}, {sT0}, 4")
        a(f"s_lshl_b32 {sT0}, {sT0}, 16")
        a(f"buffer_load_dword v125, v{vPF}, {WD}, {sT0} offen")
        a(f"s_branch {lab}")
        a.label(lab2)
        a(f"s_sub_u32 {sT0}, {sT0}, 12")
        a(f"s_lshl_b32 {sT0}, {sT0}, 16")
        a(f"buffer_load_dword v125, v{vPF}, {WO}, {sT0} offen")
        a.label(lab)
        a.restore(snap)

    def ex(Sx, i):
        a(f"v_exp_f32 v{Sx+i}, v{Sx+i}")

    def pv(O, Vf, Sx, m):
        a(f"v_smfmac_f32_32x32x32_bf16 {vr(O,16)}, {vr(Vf,4)}, {vr(Sx+8*m,8)}, v{vIDX}")

    def rdK(i):
        a(f"ds_read_b128 {vr(KF+4*(i&1),4)}, v{vAK} offset:{(i%16)*4096}", lg="k")

    def rdV(i):
        a(f"s_mov_b64 exec, {sMASK}")
        a(f"ds_read_b128 {vr(VF+8*(i&1),4)}, v{vAV} offset:{(i%16)*4096+1024}", lg="v")
        a(f"ds_read_b128 {vr(VF+8*(i&1)+4,4)}, v{vAV} offset:{(i%16)*4096+1536}", lg="v")
        a("s_mov_b64 exec, -1")

    a.wait(vm=("kv", 1))
    a("s_barrier")
    stamp("kv0")
    rdK(0)
    rdV(0)
    a.wait(lg0=True)
    mfma(S0, KF, Q0)
    pend = [lambda t=t: kv_dma(t) for t in range(8, 16)]
    ready = {3: 3, 7: 7, 15: 11, 23: 15}
    for i in range(32):
        b = i & 1
        nb = b ^ 1
        Kc, Kn, Vc, Vn = KF + 4 * b, KF + 4 * nb, VF + 8 * b, VF + 8 * nb
        if i in (3, 7, 15, 23, 31):
            if i == 3:
                a.wait(vm=[("kv", 3), "st2"])
            elif i in ready:
                a.wait(vm=("kv", ready[i]))
            a("s_barrier")
            if i == 3:
                a(f"s_cmp_lg_u32 {sW}, 0")
                a("s_cbranch_scc1 L_nof2")
                snap = a.snapshot()
                a(f"s_lshl_b32 {sT0}, {sMT}, 7")
                a(f"s_lshl_b32 {sT1}, {sNT}, 2")
                a(f"s_add_u32 {sT0}, {sT0}, {sT1}")
                a(f"s_add_u32 {sT0}, {sT0}, {F2}")
                flag_store(120, sT0)
                a.label("L_nof2")
                a.restore(snap)
                pend += wd_dmas(0)
            if i in (7, 15, 23):
                pend = wd_dmas((i + 1) // 8) + pend
        if i == 15:
            a(f"v_add_u32 v{vAK}, 0x10000, v{vAK}")
            a(f"v_add_u32 v{vAV}, 0x10000, v{vAV}")
        if i == 8:
            a(f"buffer_load_dword v122, v{vF2}, {WS}, 0 offen sc1", vm="f2")
        if i == 10:
            poll(122, vF2, WS, "f2")
            a(f"buffer_load_dword v{vG}, v{vGA}, {WS}, 0 offen sc1", vm="g")
            pend += [h_load(k) for k in range(28)]
        if i == 20:
            l2_prefetch()

        def slot():
            if pend:
                pend.pop(0)()

        ex(S0, 0)
        ex(S0, 1)
        if i > 0:
            pv(O1, Vn + 4, S1, 1)
        if i < 31:
            rdK(i + 1)
        for k in range(2, 5):
            ex(S0, k)
        mfma(S1, Kc, Q1)
        for k in range(5, 10):
            ex(S0, k)
        pv(O0, Vc, S0, 0)
        if i < 31:
            rdV(i + 1)
        for k in range(10, 16):
            ex(S0, k)
        ex(S1, 0)
        ex(S1, 1)
        pv(O0, Vc + 4, S0, 1)
        a.wait(lg0=True) if i < 31 else None
        for k in range(2, 5):
            ex(S1, k)
        if i < 31:
            mfma(S0, Kn, Q0)
        slot()
        for k in range(5, 10):
            ex(S1, k)
        pv(O1, Vc, S1, 0)
        slot()
        for k in range(10, 16):
            ex(S1, k)
    pv(O1, VF + 8 + 4, S1, 1)
    assert not pend, len(pend)
    stamp("attn")
    SCR = 98304
    a(f"s_xor_b32 {sT0}, {sW}, 4")
    a(f"s_mul_i32 {sT0}, {sT0}, 2304")
    a(f"s_add_u32 {sT0}, {sT0}, {SCR}")
    a(f"v_add_u32 v120, {sT0}, v{vL16}")
    a(f"v_lshl_add_u32 v121, v0, 2, {sT0}")
    a(f"s_mul_i32 {sT0}, {sW}, 2304")
    a(f"s_add_u32 {sT0}, {sT0}, {SCR}")
    a(f"v_add_u32 v122, {sT0}, v{vL16}")
    a(f"v_lshl_add_u32 v123, v0, 2, {sT0}")
    a(f"ds_write_b128 v120, {vr(O1,4)}")
    a(f"ds_write_b128 v120, {vr(O1+4,4)} offset:1024")
    a(f"ds_write_b32 v121, v{O1+8} offset:2048")
    a.wait(vm=("e", 3), lg0=True)
    a("s_barrier")
    a(f"ds_read_b128 {vr(S0,4)}, v122")
    a(f"ds_read_b128 {vr(S0+4,4)}, v122 offset:1024")
    a(f"ds_read_b32 v{S0+8}, v123 offset:2048")
    vWA = 128
    a("v_bfe_u32 v120, v0, 2, 2")
    a("v_lshrrev_b32 v121, 5, v0")
    a("v_lshl_add_u32 v121, v121, 2, v120")
    a("v_lshlrev_b32 v121, 7, v121")
    a("v_and_b32 v122, 1, v0")
    a("v_bfe_u32 v123, v0, 1, 1")
    a("v_lshl_or_b32 v122, v122, 1, v123")
    a("v_lshl_add_u32 v121, v122, 3, v121")
    a("v_and_b32 v120, 2, v120")
    a("v_bfe_u32 v122, v0, 4, 1")
    a("v_xor_b32 v120, v120, v122")
    a(f"v_xor_b32 v120, {sKQ}, v120")
    a("v_lshl_add_u32 v121, v120, 5, v121")
    a(f"s_lshl_b32 {sT0}, {sKQ}, 13")
    a(f"v_add_u32 v{vWA}, {sT0}, v121")
    a(f"v_xor_b32 v{vWA+1}, 64, v{vWA}")
    for k in range(2, 6):
        a(f"v_add_u32 v{vWA+k}, 0x10000, v{vWA+k-2}")
    a.wait(lg0=True)
    for k in range(9):
        a(f"v_add_f32 v{O0+k}, v{O0+k}, v{S0+k}")
    a(f"v_mul_f32 v120, 0, v{O0}")
    for k in range(1, 8):
        a(f"v_fmac_f32 v120, 0, v{O0+k}")
    a(f"v_add_f32 v120, v120, v{O0+8}")
    a(f"v_cmp_lt_f32 vcc, {fb(2.0**-60)}, v120")
    a(f"s_mov_b64 s[98:99], vcc")
    a(f"v_cmp_gt_f32 vcc, {fb(2.0**60)}, v120")
    a("s_and_b64 vcc, vcc, s[98:99]")
    a("s_cmp_eq_u64 vcc, -1")
    if o["force_slow"]:
        a("s_branch L_slow")
    else:
        a("s_cbranch_scc0 L_slow")
    a.label("L_slowret")
    snap_slow = a.snapshot()
    a(f"v_rcp_f32 v120, v{O0+8}")
    a(f"s_lshl_b32 {sT0}, {sQ0}, 5")
    a(f"s_add_u32 {sT0}, {sT0}, {sHEAD}")
    a(f"s_lshl_b32 {sOFLAG}, {sT0}, 2")
    a(f"s_add_u32 {sOFLAG}, {sOFLAG}, {F3}")
    a(f"s_lshl_b32 {sT0}, {sT0}, 10")
    a(f"s_add_u32 {sT0}, {sT0}, {OF}")
    for k in range(8):
        a(f"v_mul_f32 v{O0+k}, v{O0+k}, v120")
    cvt8(96, O0)
    a(f"buffer_store_dwordx4 v[96:99], v{vL16}, {WS}, {sT0} offen sc1", vm="ost")
    stamp("ostore")

    H0, H1, P0, P1, DW, OFR = 16, 32, 48, 64, 80, 208

    def d_reads(e, s, dst, tagk):
        sl = DSLOT[e]
        r = []
        for nb_ in range(2):
            for jj in range(2):
                r.append((f"ds_read_b64_tr_b16 {vr(dst+4*nb_+2*jj,2)}, v{vWA+2*(sl>>1)+nb_} offset:{(sl&1)*32768+s*2048+jj*1024}", (f"d{nb_}", tagk)))
        return r

    emit_reads(d_reads(0, 0, DW, 0))
    pend = []
    vF3 = 134
    a(f"v_and_b32 v{vF3}, 7, v0")
    a(f"s_lshl_b32 {sT0}, {sTBD}, 2")
    a(f"s_add_u32 {sT0}, {sT0}, {sKQ}")
    a(f"s_lshl_b32 {sT2}, {sT0}, 13")
    a(f"s_add_u32 {sT2}, {sT2}, {OF}")
    a(f"s_lshl_b32 {sT0}, {sT0}, 5")
    a(f"s_add_u32 {sT0}, {sT0}, {F3}")
    a(f"v_lshl_add_u32 v{vF3}, v{vF3}, 2, {sT0}")
    for g in range(28):
        e, s = g >> 2, g & 3
        wb = DW + 8 * (g & 1)
        if s == 3:
            vmw = {3: ("e", 4), 4: ("e", 5), 5: ("e", 6), 6: ("e", 8)}.get(e)
            if e == 2:
                a.wait(vm="ost")
                flag_store(120, sOFLAG)
            a.wait(vm=vmw, lg0=True)
            a("s_barrier")
            if e == 0:
                pend = wd_dmas(4) + wd_dmas(5)
            elif e <= 3:
                pend += wd_dmas(e + 5)
        if g == 25:
            a(f"buffer_load_dword v122, v{vF3}, {WS}, 0 offen sc1", vm="f3")
        nxt = d_reads((g + 1) >> 2, (g + 1) & 3, DW + 8 * ((g + 1) & 1), g + 1) if g < 27 else []
        if g == 0:
            a.wait(vm=("h", 27))
        for nb_ in range(2):
            a.wait(lg=(f"d{nb_}", g))
            acc = [H0, H1][nb_]
            mfma(acc, wb + 4 * nb_, HR + 4 * g, None if g == 0 else acc)
            emit_reads(nxt[2 * nb_:2 * nb_ + 2])
            if pend:
                pend.pop(0)()
    assert not pend
    stamp("down")
    poll(122, vF3, WS, "f3")
    stamp("f3ok")
    for k in range(8):
        if k == 4:
            a(f"s_add_u32 {sT2}, {sT2}, 4096")
        a(f"buffer_load_dwordx4 {vr(OFR+4*k,4)}, v{vL16}, {WS}, {sT2} offen offset:{(k%4)*1024} sc1", vm=("o", k))
    for k in range(8):
        if k and k % 2 == 0:
            a.wait(lg=("d1", 100 + k - 2))
        emit_reads(d_reads(7 + (k >> 2), k & 3, HR + 8 * k, 100 + k))
    a(f"v_sub_f32 v120, 1.0, v{vG}")
    for k in range(32):
        a(f"v_mul_f32 v{H0+k}, v{H0+k}, v120")
    RS = 98304
    a(f"s_and_b32 {sT0}, {sW}, 1")
    a(f"s_lshl_b32 {sT0}, {sT0}, 2")
    for oo in range(1, 4):
        a(f"s_xor_b32 {sT1}, {sKQ}, {oo}")
        a(f"s_add_u32 {sT1}, {sT1}, {sT0}")
        a(f"s_mul_i32 {sT1}, {sT1}, 6144")
        a(f"s_add_u32 {sT1}, {sT1}, {RS+(oo-1)*2048}")
        a(f"v_add_u32 v{134+oo}, {sT1}, v{vL16}")
    a(f"s_add_u32 {sT1}, {sKQ}, {sT0}")
    a(f"s_mul_i32 {sT1}, {sT1}, 6144")
    a(f"s_add_u32 {sT1}, {sT1}, {RS}")
    a(f"v_add_u32 v138, {sT1}, v{vL16}")
    a("v_and_b32 v139, 31, v0")
    a("v_lshrrev_b32 v140, 5, v0")
    a("v_lshlrev_b32 v140, 4, v140")
    a("v_lshl_add_u32 v139, v139, 10, v140")
    a(f"s_lshl_b32 {sT0}, {sTBD}, 15")
    a(f"s_lshl_b32 {sT1}, {sCT}, 7")
    a(f"s_add_u32 {sT0}, {sT0}, {sT1}")
    a(f"s_lshl_b32 {sT1}, {sKQ}, 5")
    a(f"s_add_u32 {sT0}, {sT0}, {sT1}")
    a.wait(lg0=True)
    for k in range(8):
        a.wait(vm=("o", k))
        for nb_ in range(2):
            acc = [P0, P1][nb_]
            mfma(acc, HR + 8 * k + 4 * nb_, OFR + 4 * k, None if k == 0 else acc)
    stamp("oproj")
    for oo in (1, 0, 2, 3):
        for k in range(8 * oo, 8 * oo + 8):
            a(f"v_fmac_f32 v{H0+k}, v{vG}, v{P0+k}")
        if oo:
            a(f"ds_write_b128 v{134+oo}, {vr(H0+8*oo,4)}")
            a(f"ds_write_b128 v{134+oo}, {vr(H0+8*oo+4,4)} offset:1024")
    a.wait(lg0=True)
    a("s_barrier")
    for k in range(6):
        a(f"ds_read_b128 {vr(P0+4*k,4)}, v138 offset:{k*1024}", lg=("rs", k))
    for oo in range(3):
        a.wait(lg=("rs", 2 * oo + 1))
        for k in range(8):
            a(f"v_add_f32 v{H0+k}, v{H0+k}, v{P0+8*oo+k}")
    cvt8(96, H0)
    a(f"buffer_store_dwordx4 v[96:99], v139, {OUT}, {sT0} offen")
    if diag:
        stamp("end")
        a.wait(vm0=True)
        stamp("endack")
        a(f"s_lshl_b32 {sT0}, s2, 3")
        a(f"s_add_u32 {sT0}, {sT0}, {sW}")
        a(f"s_lshl_b32 {sT0}, {sT0}, 7")
        a(f"s_add_u32 {sT0}, {sT0}, {DIAG}")
        a("v_lshlrev_b32 v120, 2, v0")
        a("s_mov_b32 exec_hi, 0")
        a(f"buffer_store_dword v{vST}, v120, {WS}, {sT0} offen")
    a.label("L_end")
    a("s_endpgm")

    a.label("L_slow")
    a.restore(snap_slow)
    a.fence()
    a(f"s_lshl_b32 {sT0}, {sCH}, 11")
    a(f"s_add_u32 {sT0}, {sT0}, 0x10000")
    a(f"v_subrev_u32 v120, {sT0}, v{vAK}")
    a(f"v_subrev_u32 v121, {sT0}, v{vAV}")
    a(f"s_sub_u32 {sT2}, {sKVB}, {sW1K}")
    a(f"s_mov_b32 {sT0}, {sT2}")
    a(f"s_mov_b32 {sCNT}, 64")
    a("v_mov_b32 v122, 0xff800000")
    a.label("L_slowA")
    a(f"buffer_load_dwordx4 {vr(KF,4)}, v120, {WS}, {sT0} offen sc1")
    a("s_waitcnt vmcnt(0)")
    mfma(S0, KF, Q0)
    a(f"s_add_u32 {sT0}, {sT0}, 2048")
    for k in range(8):
        a(f"v_max3_f32 v122, v122, v{S0+2*k}, v{S0+2*k+1}")
    a(f"s_sub_u32 {sCNT}, {sCNT}, 1")
    a(f"s_cmp_lg_u32 {sCNT}, 0")
    a("s_cbranch_scc1 L_slowA")
    a("v_mov_b32 v123, v122")
    a("v_permlane32_swap_b32 v123, v122")
    a("v_max_f32 v122, v122, v123")
    for k in range(16):
        a(f"v_sub_f32 v{O1+k}, 0, v122")
        a(f"v_mov_b32 v{O0+k}, 0")
    a(f"s_mov_b32 {sT0}, {sT2}")
    a(f"s_mov_b32 {sCNT}, 64")
    a.label("L_slowB")
    a(f"buffer_load_dwordx4 {vr(KF,4)}, v120, {WS}, {sT0} offen sc1")
    a(f"s_mov_b64 exec, {sMASK}")
    a(f"buffer_load_dwordx4 {vr(VF,4)}, v121, {WS}, {sT0} offen offset:1024 sc1")
    a(f"buffer_load_dwordx4 {vr(VF+4,4)}, v121, {WS}, {sT0} offen offset:1536 sc1")
    a("s_mov_b64 exec, -1")
    a("s_waitcnt vmcnt(0)")
    mfma(S0, KF, Q0, O1)
    a(f"s_add_u32 {sT0}, {sT0}, 2048")
    for k in range(16):
        ex(S0, k)
    pv(O0, VF, S0, 0)
    pv(O0, VF + 4, S0, 1)
    a(f"s_sub_u32 {sCNT}, {sCNT}, 1")
    a(f"s_cmp_lg_u32 {sCNT}, 0")
    a.fence()
    a("s_cbranch_scc1 L_slowB")
    a("s_branch L_slowret")
    return a


STAMPS = []

HEADER = open(__file__.rsplit("/", 1)[0] + "/header.txt").read() if "/" in __file__ else open("header.txt").read()


def build(path, diag=False, opts=None):
    a = gen(diag, opts)
    s = HEADER
    s += "; @launch grid=(256,1,1) block=(512,1,1) lds=163840\n"
    s += '.amdgcn_target "amdgcn-amd-amdhsa--gfx950"\n.text\n'
    s += f".globl {NAME}_kernel\n.p2align 8\n.type {NAME}_kernel,@function\n"
    s += a.text()
    s += f""".section .rodata,"a"
.p2align 6
.amdhsa_kernel {NAME}_kernel
  .amdhsa_next_free_vgpr 256
  .amdhsa_next_free_sgpr 102
  .amdhsa_accum_offset 256
  .amdhsa_group_segment_fixed_size 0
  .amdhsa_kernarg_size 88
  .amdhsa_user_sgpr_count 2
  .amdhsa_user_sgpr_kernarg_segment_ptr 1
  .amdhsa_system_sgpr_workgroup_id_x 1
.end_amdhsa_kernel
"""
    open(path, "w").write(s)
    return a


if __name__ == "__main__":
    import json
    a = build(f"cdna_kernels/{NAME}.s")
    print("pads:", len(a.pads))
    for p in a.pads:
        print("  ", p)
    build("diag.s", diag=True)
    json.dump(STAMPS, open("diag.json", "w"))
    build("slow.s", opts=dict(force_slow=True))
```

```python
import sys
from asmlib import Asm

NAME = "gated_mix__mha_block__glu_gated_glu__prompt"
F1, F2, F3 = 0, 2048, 4096
GOFF = 16384
DIAG = 32768
QF, KV, OF, HF = 1 << 20, 3 << 20, 7 << 20, 9 << 20
WSZ = 16 << 20
SPIN = 200000

X, WQKV, U1A, U1B, WG, WU, WS, WD, WO, OUT, DBG, GW = [f"s[{4+4*i}:{7+4*i}]" for i in range(12)]
sW, sW1K, sXCD, sJ, sMT, sNT, sR, sNQ, sKC0, sSTR = [f"s{i}" for i in range(52, 62)]
sT0, sT1 = "s62", "s63"
sX0, sX1, sK, sU1, sU2, sKC, sCNT, sTB, sCH, sTOKB = [f"s{i}" for i in range(86, 96)]
sMASK = "s[96:97]"
sHEAD, sQB, sKVB, sT2, sT3, sHB, sOFLAG, sTBD, sKQ, sCT, sP1, sP2, sQ0 = [f"s{i}" for i in range(64, 77)]

vL = "v0"
vST = 127
LOG2E = 1.4426950408889634


def fb(x):
    import struct
    return hex(struct.unpack("<I", struct.pack("<f", x))[0])


def vr(a, n):
    return f"v[{a}:{a+n-1}]"


def gen(diag=False, opts=None):
    o = dict(force_slow=False, fixed=0)
    o.update(opts or {})
    a = Asm()
    nst = [0]

    def stamp(name):
        if not diag:
            return
        a("s_memrealtime s[98:99]")
        a("s_memtime s[78:79]")
        a.wait(lg0=True)
        a(f"v_writelane_b32 v{vST}, s98, {nst[0]}")
        a(f"v_writelane_b32 v{vST}, s78, {nst[0]+32}")
        STAMPS.append(name)
        nst[0] += 1

    STAMPS.clear()

    def mfma(d, A, B, c=None):
        a(f"v_mfma_f32_32x32x16_bf16 {vr(d,16)}, {vr(A,4)}, {vr(B,4)}, {'0' if c is None else vr(c,16)}")

    def poll(vd, va, srd, tag, soff="0"):
        ok = a.newlab("ok")
        lp = a.newlab("spin")
        a.wait(vm=tag)
        a(f"v_cmp_ne_u32 vcc, 0, v{vd}")
        a("s_cmp_eq_u64 vcc, -1")
        a(f"s_cbranch_scc1 {ok}")
        snap = a.snapshot()
        a(f"s_mov_b32 {sCNT}, {SPIN}")
        a.label(lp)
        a(f"buffer_load_dword v{vd}, v{va}, {srd}, {soff} offen sc1")
        a("s_waitcnt vmcnt(0)")
        a(f"v_cmp_ne_u32 vcc, 0, v{vd}")
        a(f"s_sub_u32 {sCNT}, {sCNT}, 1")
        a(f"s_cbranch_scc1 {ok}")
        a("s_cmp_eq_u64 vcc, -1")
        a(f"s_cbranch_scc0 {lp}")
        a.label(ok)
        a.restore(snap)

    def flag_store(vtmp, soff, srd=WS):
        snap = a.snapshot()
        a(f"v_mov_b32 v{vtmp}, 1")
        a(f"v_mov_b32 v{vtmp+1}, 0")
        a("s_mov_b64 exec, 1")
        a(f"buffer_store_dword v{vtmp}, v{vtmp+1}, {srd}, {soff} offen sc1")
        a("s_mov_b64 exec, -1")
        return snap

    a.label(NAME + "_kernel")
    a("s_cmp_ge_u32 s2, 256")
    a("s_cbranch_scc1 L_end")
    a("s_load_dwordx16 s[64:79], s[0:1], 0")
    a("s_load_dwordx4 s[80:83], s[0:1], 64")
    a("s_load_dwordx2 s[84:85], s[0:1], 80")
    if diag:
        a(f"v_mov_b32 v{vST}, 0")
    if diag or o["fixed"]:
        a("s_memrealtime s[100:101]")
    a("v_lshrrev_b32 v1, 6, v0")
    a("v_and_b32 v0, 63, v0")
    a(f"v_readfirstlane_b32 {sW}, v1")
    a(f"s_and_b32 {sXCD}, s2, 7")
    a(f"s_lshr_b32 {sJ}, s2, 3")
    a(f"s_lshr_b32 {sNQ}, {sXCD}, 1")
    a(f"s_lshr_b32 {sR}, {sJ}, 3")
    a(f"s_and_b32 {sT0}, {sJ}, 7")
    a(f"s_and_b32 {sT1}, {sXCD}, 1")
    a(f"s_lshl_b32 {sT1}, {sT1}, 3")
    a(f"s_add_u32 {sMT}, {sT0}, {sT1}")
    a(f"s_lshl_b32 {sNT}, {sNQ}, 2")
    a(f"s_add_u32 {sNT}, {sNT}, {sR}")
    a(f"s_lshl_b32 {sKC0}, {sR}, 1")
    a(f"s_add_u32 {sKC0}, {sKC0}, {sT0}")
    a(f"s_and_b32 {sKC0}, {sKC0}, 7")
    a(f"s_lshl_b32 {sW1K}, {sW}, 10")
    a(f"s_and_b32 {sTB}, {sW}, 3")
    a(f"s_lshr_b32 {sCH}, {sW}, 2")
    a(f"s_lshl_b32 {sTOKB}, {sMT}, 2")
    a(f"s_add_u32 {sTOKB}, {sTOKB}, {sTB}")
    a("s_mov_b32 s96, 0x0000ffff")
    a("s_mov_b32 s97, 0x0000ffff")
    a("v_lshrrev_b32 v104, 3, v0")
    a("v_and_b32 v105, 7, v0")
    a("v_and_b32 v106, 2, v104")
    a("v_lshlrev_b32 v106, 1, v106")
    a("v_xor_b32 v106, v105, v106")
    a("v_lshlrev_b32 v106, 4, v106")
    a(f"s_lshl_b32 {sT0}, {sW}, 3")
    a(f"v_add_u32 v104, {sT0}, v104")
    a("v_bfe_u32 v107, v104, 1, 3")
    a("v_xor_b32 v107, v105, v107")
    a("v_lshlrev_b32 v107, 4, v107")
    a("v_lshl_add_u32 v1, v104, 10, v107")
    a(f"s_lshl_b32 {sT0}, {sMT}, 17")
    a(f"v_add_u32 v1, {sT0}, v1")
    a("v_mul_u32_u24 v2, 3072, v104")
    a(f"s_lshl_b32 {sT0}, {sNT}, 7")
    a(f"s_add_u32 {sT0}, {sT0}, 1024")
    a(f"v_add3_u32 v2, v2, {sT0}, v106")
    a(f"s_mul_i32 {sT0}, {sNQ}, 7")
    a(f"s_lshl_b32 {sT1}, {sR}, 1")
    a(f"s_add_u32 s3, {sT0}, {sT1}")
    a(f"s_cmp_lt_u32 {sR}, 3")
    a(f"s_movk_i32 {sSTR}, 3072")
    a(f"s_cselect_b32 {sSTR}, 3584, {sSTR}")
    a(f"s_cselect_b32 {sT1}, 1, 0")
    a(f"s_add_u32 {sU2}, s3, {sT1}")
    a(f"s_mov_b32 {sU1}, s3")
    a(f"s_lshl_b32 {sT0}, s3, 7")
    a(f"s_lshl_b32 {sT1}, {sNQ}, 8")
    a(f"s_cmp_lt_u32 {sR}, 3")
    a(f"s_cselect_b32 {sT0}, {sT0}, {sT1}")
    a(f"s_cselect_b32 {sT1}, 0, 128")
    a(f"s_add_u32 {sT1}, {sT1}, {sT0}")
    a(f"v_mul_u32_u24 v107, {sSTR}, v104")
    a("v_xor_b32 v108, 32, v106")
    a(f"v_add3_u32 v3, v107, {sT0}, v106")
    a(f"v_add3_u32 v4, v107, {sT1}, v108")
    a("v_mul_u32_u24 v107, 3584, v104")
    a(f"s_lshl_b32 {sT0}, {sU2}, 7")
    a(f"v_add3_u32 v5, v107, {sT0}, v106")
    a(f"v_add3_u32 v6, v107, {sT0}, v108")
    vL16 = 126
    a(f"v_lshlrev_b32 v{vL16}, 4, v0")
    a("s_waitcnt lgkmcnt(0)")

    def srd(base, p, size):
        a(f"s_mov_b32 s{base}, s{p}")
        a(f"s_mov_b32 s{base+1}, s{p+1}")
        a(f"s_mov_b32 s{base+2}, {size}")
        a(f"s_mov_b32 s{base+3}, 0x20000")

    srd(4, 64, 2048 * 1024)
    srd(8, 66, 512 * 3072)
    a(f"s_cmp_lt_u32 {sR}, 3")
    a("s_cselect_b32 s12, s72, s66")
    a("s_cselect_b32 s13, s73, s67")
    a(f"s_cselect_b32 s14, {512*3584}, s10")
    a("s_mov_b32 s15, 0x20000")
    a("s_cselect_b32 s16, s74, s66")
    a("s_cselect_b32 s17, s75, s67")
    a("s_mov_b32 s18, s14")
    a("s_mov_b32 s19, 0x20000")
    srd(48, 78, 1024)
    srd(28, 84, WSZ)

    XR, KR, DR = 0, 65536, 98304

    def chunk_scalars(c):
        a(f"s_add_u32 {sKC}, {sKC0}, {c}")
        a(f"s_and_b32 {sKC}, {sKC}, 7")

    def dma(va, srd_, soff, ldsoff, tag, pre=None, sc1=False):
        a(f"s_add_u32 m0, {sW1K}, {ldsoff}")
        if pre:
            a(pre)
        a(f"buffer_load_dwordx4 v{va}, {srd_}, {soff} offen {'sc1 ' if sc1 else ''}lds", vm=tag)

    def p1_dmas(c):
        sl = c & 3
        t = ("c", c)

        def d0():
            chunk_scalars(c)
            dma(1, X, sX0, XR + sl * 16384, t, pre=f"s_lshl_b32 {sX0}, {sKC}, 7")

        def d1():
            dma(1, X, sX1, XR + sl * 16384 + 8192, t, pre=f"s_add_u32 {sX1}, {sX0}, 65536")

        def d2():
            dma(2, WQKV, sK, KR + sl * 8192, t, pre=f"s_mul_i32 {sK}, {sKC}, {64*3072}")

        def d3():
            a(f"s_lshl_b32 {sT0}, {sKC}, 6")
            dma(3, U1A, sU1, DR + sl * 16384, t, pre=f"s_mul_i32 {sU1}, {sT0}, {sSTR}")

        def d4():
            dma(4, U1B, sU1, DR + sl * 16384 + 8192, t)

        return [d0, d1, d2, d3, d4]

    def u2_loc(u):
        return (DR if u % 2 == 0 else XR) + (u >> 1) * 16384

    def p2_dmas(u):
        t = ("u", u)

        def d0():
            chunk_scalars(u)
            dma(5, WG, sU2, u2_loc(u), t, pre=f"s_mul_i32 {sU2}, {sKC}, {64*3584}")

        def d1():
            dma(6, WU, sU2, u2_loc(u) + 8192, t)

        return [d0, d1]

    a(f"s_mov_b32 s3, {sU1}")
    a(f"s_mov_b32 {sCNT}, {sU2}")
    for d in p1_dmas(0):
        d()
    a("s_cmp_lg_u32 s2, 0")
    a("s_cbranch_scc1 L_noclr")
    snap = a.snapshot()
    for i in range(4):
        a(f"v_mov_b32 v{112+i}, 0")
    a(f"s_lshl_b32 {sT0}, {sW}, 11")
    a(f"buffer_store_dwordx4 v[112:115], v{vL16}, {WS}, {sT0} offen sc1")
    a(f"buffer_store_dwordx4 v[112:115], v{vL16}, {WS}, {sT0} offen offset:1024 sc1")
    a("s_nop 1")
    a.label("L_noclr")
    a.restore(snap)
    a(f"s_lshl_b32 {sT0}, {sMT}, 7")
    a(f"s_lshl_b32 {sT1}, {sNT}, 3")
    a(f"s_add_u32 {sT0}, {sT0}, {sT1}")
    a(f"s_add_u32 {sT0}, {sT0}, {sW}")
    a(f"s_lshl_b32 {sT1}, {sT0}, 10")
    a(f"buffer_load_dwordx4 v[104:107], v{vL16}, {X}, {sT1} offen", vm="gate")
    a(f"buffer_load_dwordx4 v[108:111], v{vL16}, {GW}, 0 offen", vm="gate")
    srd(20, 72, 512 * 3584)
    srd(24, 74, 512 * 3584)
    srd(32, 76, 1792 * 1024)
    srd(36, 68, 512 * 1024)
    srd(40, 80, 2048 * 1024)
    srd(44, 82, 256)
    a(f"s_mov_b32 {sP1}, s3")
    a(f"s_mov_b32 {sP2}, {sCNT}")
    a(f"s_lshl_b32 {sT3}, {sT0}, 2")
    a(f"s_add_u32 {sT3}, {sT3}, {GOFF}")
    for d in p1_dmas(1):
        d()
    if diag:
        a(f"v_writelane_b32 v{vST}, s100, 0")
        STAMPS.append("start")
        nst[0] = 1
    stamp("issued01")
    a("v_and_b32 v112, 31, v0")
    a("v_lshrrev_b32 v113, 5, v0")
    a("v_bfe_u32 v114, v112, 1, 3")
    a("v_xor_b32 v114, v114, v113")
    a("v_lshlrev_b32 v114, 4, v114")
    a(f"s_lshl_b32 {sT0}, {sTB}, 12")
    a("v_lshl_add_u32 v114, v112, 7, v114")
    a(f"v_add_u32 v7, {sT0}, v114")
    for s in range(1, 4):
        a(f"v_xor_b32 v{7+s}, {s<<5}, v7")
    a("v_bfe_u32 v114, v0, 2, 2")
    a("v_bfe_u32 v115, v0, 4, 1")
    a("v_and_b32 v116, 3, v0")
    a("v_lshl_add_u32 v117, v113, 3, v114")
    a("v_lshlrev_b32 v117, 7, v117")
    a("v_lshl_add_u32 v117, v116, 3, v117")
    a("v_and_b32 v118, 2, v114")
    a("v_xor_b32 v118, v118, v115")
    a(f"s_lshl_b32 {sT0}, {sCH}, 1")
    a(f"v_xor_b32 v118, {sT0}, v118")
    a("v_lshl_add_u32 v119, v118, 5, v117")
    a(f"v_add_u32 v11, {KR}, v119")
    a("v_lshl_add_u32 v14, v115, 13, v119")
    a("v_xor_b32 v15, 32, v14")
    a(f"v_add_u32 v12, {DR}, v14")
    a(f"v_add_u32 v13, {DR}, v15")
    for d in p1_dmas(2):
        d()
    a.wait(vm="gate")
    a("v_mov_b32 v112, 0")
    for i in range(4):
        a(f"v_lshlrev_b32 v113, 16, v{104+i}")
        a(f"v_lshlrev_b32 v114, 16, v{108+i}")
        a(f"v_and_b32 v115, 0xffff0000, v{104+i}")
        a(f"v_and_b32 v116, 0xffff0000, v{108+i}")
        a("v_fmac_f32 v112, v113, v114")
        a("v_fmac_f32 v112, v115, v116")
    for m in ("row_shr:1 row_mask:0xf", "row_shr:2 row_mask:0xf", "row_shr:4 row_mask:0xf", "row_shr:8 row_mask:0xf",
              "row_bcast:15 row_mask:0xa", "row_bcast:31 row_mask:0xc"):
        a(f"v_add_f32_dpp v112, v112, v112 {m} bank_mask:0xf")
    a(f"v_mul_f32 v112, {fb(-LOG2E)}, v112")
    a("v_exp_f32 v112, v112")
    a("v_add_f32 v112, 1.0, v112")
    a("v_rcp_f32 v112, v112")
    a("v_mov_b32 v113, 0")
    a("s_mov_b32 exec_lo, 0")
    a("s_mov_b32 exec_hi, 0x80000000")
    a(f"buffer_store_dword v112, v113, {WS}, {sT3} offen sc1", vm="gst")
    a("s_mov_b64 exec, -1")

    A0, A1, A2, A3, WF, XF = 16, 32, 48, 64, 80, 128

    def p1_reads(g):
        c, s = g >> 2, g & 3
        sl = c & 3
        wb = WF + 12 * (g & 1)
        r = []
        r.append((f"ds_read_b128 {vr(XF+4*g,4)}, v{7+s} offset:{XR+sl*16384}", ("x", g)))
        for jj in range(2):
            r.append((f"ds_read_b64_tr_b16 {vr(wb+2*jj,2)}, v11 offset:{sl*8192+s*2048+jj*512}", ("w0", g)))
        for b in range(2):
            for jj in range(2):
                r.append((f"ds_read_b64_tr_b16 {vr(wb+4+4*b+2*jj,2)}, v{12+b} offset:{sl*16384+s*2048+jj*512}", (f"w{1+b}", g)))
        return r

    def p2_reads(g):
        u, s = g >> 2, g & 3
        wb = WF + 12 * (g & 1)
        r = []
        for b in range(2):
            for jj in range(2):
                va = (12 if u % 2 == 0 else 14) + b
                r.append((f"ds_read_b64_tr_b16 {vr(wb+4+4*b+2*jj,2)}, v{va} offset:{(u>>1)*16384+s*2048+jj*512}", (f"y{1+b}", g)))
        return r

    def emit_reads(rs):
        for t, tag in rs:
            a(t, lg=tag)

    a.wait(vm=("c", 0))
    a("s_barrier")
    stamp("c0ready")
    a(f"s_or_b32 {sT0}, s2, {sW}")
    a("s_cbranch_scc1 L_nogo")
    snap = flag_store(112, "0", srd=DBG)
    a.label("L_nogo")
    a.restore(snap)
    emit_reads(p1_reads(0))

    def cvt8(dst, src):
        for i in range(4):
            a(f"v_cvt_pk_bf16_f32 v{dst+i}, v{src+2*i}, v{src+2*i+1}")

    def pass1(isV):
        pend = list(p1_dmas(3))
        for g in range(32):
            c, s = g >> 2, g & 3
            wb = WF + 12 * (g & 1)
            if s == 3:
                if c < 7:
                    a.wait(vm=("c", c + 1))
                else:
                    a.wait(vm=("u", 1))
                a("s_barrier")
                assert not pend
                if 1 <= c <= 4:
                    pend = list(p1_dmas(c + 3))
                elif c >= 5:
                    pend = p2_dmas(2 * (c - 5)) + p2_dmas(2 * (c - 5) + 1)
                if c == 2:
                    a(f"s_mul_i32 {sT0}, {sKC0}, {64*3584}")
                    a(f"buffer_load_dword v125, v5, {WG}, {sT0} offen")
                    a(f"buffer_load_dword v125, v6, {WU}, {sT0} offen")
                if c == 7:
                    a("v_mov_b32 v123, 0")
                    a(f"buffer_load_dword v122, v123, {DBG}, 0 offen sc1", vm="go")
            nxt = p1_reads(g + 1) if g < 31 else p2_reads(0)
            parts = [nxt[:3], nxt[3:5], nxt[5:]] if g < 31 else [nxt[:2], nxt[2:], []]
            for b in range(3):
                a.wait(lg=(f"w{b}", g))
                acc = [A0, A1, A2][b]
                wf = wb + 4 * b
                if b == 0 and isV:
                    mfma(acc, XF + 4 * g, wf, None if g == 0 else acc)
                else:
                    mfma(acc, wf, XF + 4 * g, None if g == 0 else acc)
                emit_reads(parts[b])
                if pend and (b != 1 or g == 31 or g < 3):
                    pend.pop(0)()
        while pend:
            pend.pop(0)()
        cvt8(104, A0)
        cvt8(108, A0 + 8)
        a(f"s_lshl_b32 {sT1}, {sTOKB}, 11")
        if not isV:
            a(f"s_lshl_b32 {sT0}, {sNT}, 1")
            a(f"s_add_u32 {sT0}, {sT0}, {sCH}")
            a(f"s_lshl_b32 {sT0}, {sT0}, 18")
            a(f"s_add_u32 {sT0}, {sT0}, {sT1}")
            a(f"s_add_u32 {sT0}, {sT0}, {KV}")
            a(f"s_add_u32 {sT1}, {sT0}, 131072")
            a(f"buffer_store_dwordx4 v[104:107], v{vL16}, {WS}, {sT0} offen sc1", vm="st1")
            a(f"buffer_store_dwordx4 v[108:111], v{vL16}, {WS}, {sT1} offen sc1", vm="st1")
        else:
            a("v_bfe_u32 v112, v0, 4, 1")
            a("v_lshrrev_b32 v113, 5, v0")
            a("v_and_b32 v114, 15, v0")
            a("v_lshlrev_b32 v112, 17, v112")
            a("v_lshl_add_u32 v112, v113, 8, v112")
            a("v_lshl_add_u32 v112, v114, 4, v112")
            a(f"s_lshl_b32 {sT0}, {sNT}, 1")
            a(f"s_add_u32 {sT0}, {sT0}, {sCH}")
            a(f"s_lshl_b32 {sT0}, {sT0}, 18")
            a(f"s_add_u32 {sT0}, {sT0}, {sT1}")
            a(f"s_sub_u32 {sT0}, {sT0}, {32*131072-KV}")
            a(f"buffer_store_dwordx4 v[104:107], v112, {WS}, {sT0} offen offset:1024 sc1", vm="st1")
            a(f"buffer_store_dwordx4 v[108:111], v112, {WS}, {sT0} offen offset:1536 sc1", vm="st1")

    a(f"s_cmp_ge_u32 {sNT}, 8")
    a("s_cbranch_scc1 L_p1v")
    snap = a.snapshot()
    pass1(False)
    a("s_branch L_p1done")
    a.label("L_p1v")
    a.restore(snap)
    pass1(True)
    a.label("L_p1done")
    a("s_nop 1")
    stamp("pass1")

    def gu_epilogue(accs, sP, tag):
        a(f"s_mul_i32 {sT0}, {sTOKB}, 114688")
        a(f"s_lshl_b32 {sT1}, {sP}, 1")
        a(f"s_add_u32 {sT1}, {sT1}, {sCH}")
        a(f"s_lshl_b32 {sT1}, {sT1}, 11")
        a(f"s_add_u32 {sT0}, {sT0}, {sT1}")
        a(f"s_add_u32 {sT0}, {sT0}, {HF}")
        for b, acc in enumerate(accs):
            for i in range(8):
                a(f"v_mul_f32 v{acc+i}, {fb(-LOG2E)}, v{acc+i}")
            for i in range(8):
                a(f"v_exp_f32 v{acc+i}, v{acc+i}")
            for i in range(8):
                a(f"v_add_f32 v{acc+i}, 1.0, v{acc+i}")
            for i in range(8):
                a(f"v_rcp_f32 v{acc+i}, v{acc+i}")
            for i in range(8):
                a(f"v_mul_f32 v{acc+i}, v{acc+i}, v{acc+8+i}")
            cvt8(acc + 8, acc)
            a(f"buffer_store_dwordx4 {vr(acc+8,4)}, v{vL16}, {WS}, {sT0} offen offset:{b*1024} sc1", vm=tag)

    a(f"s_cmp_eq_u32 {sR}, 3")
    a("s_cbranch_scc1 L_qepi")
    snap = a.snapshot()
    gu_epilogue([A1, A2], sP1, "st1")
    snap2 = a.snapshot()
    a("s_branch L_epi1done")
    a.label("L_qepi")
    a.restore(snap)
    a(f"s_lshl_b32 {sT0}, {sNQ}, 2")
    a(f"s_add_u32 {sT0}, {sT0}, {sCH}")
    a(f"s_lshl_b32 {sT0}, {sT0}, 17")
    a(f"s_lshl_b32 {sT1}, {sTOKB}, 10")
    a(f"s_add_u32 {sT0}, {sT0}, {sT1}")
    a(f"s_add_u32 {sT0}, {sT0}, {QF}")
    for b, acc in enumerate([A1, A2]):
        for i in range(16):
            a(f"v_mul_f32 v{acc+i}, {fb(LOG2E*0.25)}, v{acc+i}")
        for hh in range(2):
            dst = 104 + 4 * (2 * b + hh)
            cvt8(dst, acc + 8 * hh)
            a(f"s_add_u32 {sT1}, {sT0}, {(4*hh+b)*65536}")
            a(f"buffer_store_dwordx4 {vr(dst,4)}, v{vL16}, {WS}, {sT1} offen sc1", vm="st1")
    a.label("L_epi1done")
    a.restore(snap2)
    a("s_nop 1")
    stamp("epi1")

    a(f"s_and_b32 {sT0}, {sJ}, 3")
    a(f"s_lshl_b32 {sHEAD}, {sXCD}, 2")
    a(f"s_add_u32 {sHEAD}, {sHEAD}, {sT0}")
    a(f"s_lshr_b32 {sQB}, {sJ}, 2")
    a(f"s_lshl_b32 {sKVB}, {sHEAD}, 17")
    a(f"s_add_u32 {sKVB}, {sKVB}, {KV}")
    a("v_and_b32 v112, 15, v0")
    a("v_bfe_u32 v113, v0, 4, 1")
    a("v_lshlrev_b32 v112, 2, v112")
    a("v_lshl_add_u32 v112, v113, 10, v112")
    a(f"s_lshl_b32 {sT0}, {sXCD}, 7")
    a(f"v_add_u32 v112, {sT0}, v112")
    a(f"s_lshl_b32 {sT0}, {sNQ}, 9")
    a(f"s_add_u32 {sT0}, {sT0}, 384")
    a(f"s_lshl_b32 {sT1}, {sQB}, 3")
    a(f"s_add_u32 {sT0}, {sT0}, {sT1}")
    a("v_and_b32 v113, 1, v0")
    a(f"v_lshl_add_u32 v113, v113, 2, {sT0}")
    a("v_cmp_gt_u32 vcc, 32, v0")
    a("v_cndmask_b32 v124, v113, v112, vcc")

    pend = []
    for g in range(32):
        u, s = g >> 2, g & 3
        wb = WF + 12 * (g & 1)
        if g == 3:
            a.wait(vm=("u", 5))
            a("s_barrier")
            pend = p2_dmas(6) + p2_dmas(7)
        if g == 11:
            a.wait(vm="st1")
            a("s_barrier")
            a(f"s_cmp_lg_u32 {sW}, 0")
            a("s_cbranch_scc1 L_nof1")
            snap = a.snapshot()
            poll(122, 123, DBG, "go")
            a(f"s_lshl_b32 {sT0}, {sNT}, 7")
            a(f"s_lshl_b32 {sT1}, {sMT}, 2")
            a(f"s_add_u32 {sT0}, {sT0}, {sT1}")
            flag_store(112, sT0)
            a.label("L_nof1")
            a.restore(snap)
        if g == 23:
            a.wait(vm=("u", 7))
            a("s_barrier")
        if g == 28:
            a(f"s_cmp_lg_u32 {sW}, 0")
            a("s_cbranch_scc1 L_nop1")
            snap = a.snapshot()
            a(f"buffer_load_dword v122, v124, {WS}, 0 offen sc1")
            a.label("L_nop1")
            a.restore(snap)
        nxt = p2_reads(g + 1) if g < 31 else []
        for b in range(2):
            a.wait(lg=(f"y{1+b}", g))
            acc = [A0, A3][b]
            mfma(acc, wb + 4 + 4 * b, XF + 4 * g, None if g == 0 else acc)
            emit_reads(nxt[2 * b:2 * b + 2])
            if pend and b == 0:
                pend.pop(0)()
    stamp("pass2")
    a(f"s_cmp_lg_u32 {sW}, 0")
    a("s_cbranch_scc1 L_nop2")
    snap = a.snapshot()
    a.vm.append("f1")
    poll(122, 124, WS, "f1")
    a.label("L_nop2")
    a.restore(snap)
    a("s_barrier")
    stamp("f1ok")

    S0, S1, O0, O1, Q0, Q1, KF, VF = 16, 32, 48, 64, 80, 84, 88, 96
    vIDX, vAK, vAV = 112, 113, 114
    HR = 144

    def kv_dma(t):
        a(f"s_add_u32 {sT0}, {sKVB}, {sW1K}") if t == 0 else None
        if t == 0:
            a(f"s_mov_b32 {sKVB}, {sT0}")
        dma(vL16, WS, sT1, t * 8192, ("kv", t), pre=f"s_add_u32 {sT1}, {sKVB}, {t*8192}", sc1=True)

    a(f"s_lshl_b32 {sQ0}, {sQB}, 2")
    a(f"s_add_u32 {sQ0}, {sQ0}, {sTB}")
    a(f"s_lshl_b32 {sQ0}, {sQ0}, 1")
    a(f"s_add_u32 {sQ0}, {sQ0}, {sCH}")
    kv_dma(0)
    a(f"s_lshl_b32 {sT0}, {sHEAD}, 6")
    a(f"s_add_u32 {sT0}, {sT0}, {sQ0}")
    a(f"s_lshl_b32 {sT0}, {sT0}, 10")
    a(f"s_add_u32 {sT0}, {sT0}, {QF}")
    a(f"s_xor_b32 {sT2}, {sT0}, 1024")
    a(f"buffer_load_dwordx4 {vr(Q0,4)}, v{vL16}, {WS}, {sT0} offen sc1", vm="q")
    a(f"buffer_load_dwordx4 {vr(Q1,4)}, v{vL16}, {WS}, {sT2} offen sc1", vm="q")
    for t in range(1, 8):
        kv_dma(t)
    gu_epilogue([A0, A3], sP2, "st2")
    stamp("epi2")
    a(f"s_and_b32 {sTBD}, {sJ}, 3")
    a(f"s_lshl_b32 {sT0}, {sXCD}, 2")
    a(f"s_add_u32 {sTBD}, {sTBD}, {sT0}")
    a(f"s_lshr_b32 {sT2}, {sTBD}, 1")
    a(f"s_lshl_b32 {sTBD}, {sTBD}, 1")
    a(f"s_and_b32 {sT0}, {sW}, 1")
    a(f"s_add_u32 {sTBD}, {sTBD}, {sT0}")
    a(f"s_lshr_b32 {sKQ}, {sW}, 1")
    a(f"s_lshr_b32 {sCT}, {sJ}, 2")
    a(f"s_mul_i32 {sHB}, {sTBD}, 114688")
    a(f"s_mul_i32 {sT0}, {sKQ}, {28*1024}")
    a(f"s_add_u32 {sHB}, {sHB}, {sT0}")
    a(f"s_add_u32 {sHB}, {sHB}, {HF}")
    vF2, vWD, vPF, vG, vGA = 115, 116, 117, 118, 119
    a(f"v_and_b32 v{vF2}, 15, v0")
    a(f"s_lshl_b32 {sT2}, {sT2}, 7")
    a(f"s_add_u32 {sT2}, {sT2}, {F2}")
    a(f"v_lshl_add_u32 v{vF2}, v{vF2}, 2, {sT2}")
    a("v_lshrrev_b32 v120, 3, v0")
    a("v_and_b32 v121, 7, v0")
    a("v_and_b32 v122, 2, v120")
    a("v_lshlrev_b32 v122, 1, v122")
    a("v_xor_b32 v121, v121, v122")
    a("v_lshlrev_b32 v121, 4, v121")
    a("v_lshl_add_u32 v120, v120, 10, v121")
    a(f"s_lshl_b32 {sT0}, {sW}, 13")
    a(f"s_lshl_b32 {sT1}, {sCT}, 7")
    a(f"s_add_u32 {sT0}, {sT0}, {sT1}")
    a(f"v_add_u32 v{vWD}, {sT0}, v120")
    a(f"v_lshl_add_u32 v{vPF}, v0, 10, {sT1}")
    a(f"v_and_b32 v{vGA}, 31, v0")
    a(f"s_lshl_b32 {sT0}, {sTBD}, 7")
    a(f"s_add_u32 {sT0}, {sT0}, {GOFF}")
    a(f"v_lshl_add_u32 v{vGA}, v{vGA}, 2, {sT0}")
    a(f"v_mov_b32 v{vIDX}, 0xdddddddd")
    a("v_and_b32 v120, 0x13, v0")
    a("v_bfe_u32 v121, v0, 2, 1")
    a("v_lshl_or_b32 v120, v121, 3, v120")
    a("v_bfe_u32 v121, v0, 3, 1")
    a("v_lshl_or_b32 v120, v121, 2, v120")
    a("v_lshrrev_b32 v121, 5, v0")
    a("v_lshlrev_b32 v120, 4, v120")
    a("v_lshl_add_u32 v120, v121, 9, v120")
    a(f"s_lshl_b32 {sT0}, {sCH}, 11")
    a(f"v_add_u32 v{vAK}, {sT0}, v120")
    a("v_and_b32 v120, 15, v0")
    a("v_lshlrev_b32 v120, 4, v120")
    a("v_lshl_add_u32 v120, v121, 8, v120")
    a(f"v_add_u32 v{vAV}, {sT0}, v120")
    for i in range(16):
        a(f"v_mov_b32 v{VF+i}, 0x3f803f80")
    for i in range(32):
        a(f"v_mov_b32 v{O0+i}, 0")

    DSLOT = [4, 0, 1, 2, 3, 4, 0, 1, 2]

    def wd_dmas(e):
        r = []
        for q in range(4):
            def d(q=q):
                row = 448 * q + 64 * e if e < 7 else 128 * q + 64 * (e - 7)
                dma(vWD, WD if e < 7 else WO, sT1, DSLOT[e] * 32768 + q * 8192, ("e", e), pre=f"s_mov_b32 {sT1}, {row*1024}")
            r.append(d)
        return r

    def h_load(i):
        def d():
            if i % 4 == 0 and i:
                a(f"s_add_u32 {sHB}, {sHB}, 4096")
            a(f"buffer_load_dwordx4 {vr(HR+4*i,4)}, v{vL16}, {WS}, {sHB} offen offset:{(i%4)*1024} sc1", vm=("h", i))
        return d

    def l2_prefetch():
        lab = a.newlab("nopf")
        lab2 = a.newlab("pfo")
        snap = a.snapshot()
        a(f"s_cmp_ge_u32 {sW}, 5")
        a(f"s_cbranch_scc1 {lab}")
        a(f"s_and_b32 {sT0}, {sJ}, 3")
        a(f"s_mul_i32 {sT0}, {sT0}, 5")
        a(f"s_add_u32 {sT0}, {sT0}, {sW}")
        a(f"s_cmp_ge_u32 {sT0}, 12")
        a(f"s_cbranch_scc1 {lab2}")
        a(f"s_mul_i32 {sT1}, {sT0}, 43")
        a(f"s_lshr_b32 {sT1}, {sT1}, 7")
        a(f"s_lshl_b32 {sT1}, {sT1}, 2")
        a(f"s_add_u32 {sT0}, {sT0}, {sT1}")
        a(f"s_add_u32 {sT0}, {sT0}, 4")
        a(f"s_lshl_b32 {sT0}, {sT0}, 16")
        a(f"buffer_load_dword v125, v{vPF}, {WD}, {sT0} offen")
        a(f"s_branch {lab}")
        a.label(lab2)
        a(f"s_sub_u32 {sT0}, {sT0}, 12")
        a(f"s_lshl_b32 {sT0}, {sT0}, 16")
        a(f"buffer_load_dword v125, v{vPF}, {WO}, {sT0} offen")
        a.label(lab)
        a.restore(snap)

    def ex(Sx, i):
        a(f"v_exp_f32 v{Sx+i}, v{Sx+i}")

    def pv(O, Vf, Sx, m):
        a(f"v_smfmac_f32_32x32x32_bf16 {vr(O,16)}, {vr(Vf,4)}, {vr(Sx+8*m,8)}, v{vIDX}")

    def rdK(i):
        a(f"ds_read_b128 {vr(KF+4*(i&1),4)}, v{vAK} offset:{(i%16)*4096}", lg="k")

    def rdV(i):
        a(f"s_mov_b64 exec, {sMASK}")
        a(f"ds_read_b128 {vr(VF+8*(i&1),4)}, v{vAV} offset:{(i%16)*4096+1024}", lg="v")
        a(f"ds_read_b128 {vr(VF+8*(i&1)+4,4)}, v{vAV} offset:{(i%16)*4096+1536}", lg="v")
        a("s_mov_b64 exec, -1")

    a.wait(vm=("kv", 1))
    a("s_barrier")
    stamp("kv0")
    rdK(0)
    rdV(0)
    a.wait(lg0=True)
    mfma(S0, KF, Q0)
    pend = [lambda t=t: kv_dma(t) for t in range(8, 16)]
    ready = {3: 3, 7: 7, 15: 11, 23: 15}
    for i in range(32):
        b = i & 1
        nb = b ^ 1
        Kc, Kn, Vc, Vn = KF + 4 * b, KF + 4 * nb, VF + 8 * b, VF + 8 * nb
        if i in (3, 7, 15, 23, 31):
            if i == 3:
                a.wait(vm=[("kv", 3), "st2"])
            elif i in ready:
                a.wait(vm=("kv", ready[i]))
            a("s_barrier")
            if i == 3:
                a(f"s_cmp_lg_u32 {sW}, 0")
                a("s_cbranch_scc1 L_nof2")
                snap = a.snapshot()
                a(f"s_lshl_b32 {sT0}, {sMT}, 7")
                a(f"s_lshl_b32 {sT1}, {sNT}, 2")
                a(f"s_add_u32 {sT0}, {sT0}, {sT1}")
                a(f"s_add_u32 {sT0}, {sT0}, {F2}")
                flag_store(120, sT0)
                a.label("L_nof2")
                a.restore(snap)
                pend += wd_dmas(0)
            if i in (7, 15, 23):
                pend = wd_dmas((i + 1) // 8) + pend
        if i == 15:
            a(f"v_add_u32 v{vAK}, 0x10000, v{vAK}")
            a(f"v_add_u32 v{vAV}, 0x10000, v{vAV}")
        if i == 8:
            a(f"buffer_load_dword v122, v{vF2}, {WS}, 0 offen sc1", vm="f2")
        if i == 10:
            poll(122, vF2, WS, "f2")
            a(f"buffer_load_dword v{vG}, v{vGA}, {WS}, 0 offen sc1", vm="g")
            pend += [h_load(k) for k in range(28)]
        if i == 20:
            l2_prefetch()

        def slot():
            if pend:
                pend.pop(0)()

        ex(S0, 0)
        ex(S0, 1)
        if i > 0:
            pv(O1, Vn + 4, S1, 1)
        if i < 31:
            rdK(i + 1)
        for k in range(2, 5):
            ex(S0, k)
        mfma(S1, Kc, Q1)
        for k in range(5, 10):
            ex(S0, k)
        pv(O0, Vc, S0, 0)
        if i < 31:
            rdV(i + 1)
        for k in range(10, 16):
            ex(S0, k)
        ex(S1, 0)
        ex(S1, 1)
        pv(O0, Vc + 4, S0, 1)
        a.wait(lg0=True) if i < 31 else None
        for k in range(2, 5):
            ex(S1, k)
        if i < 31:
            mfma(S0, Kn, Q0)
        slot()
        for k in range(5, 10):
            ex(S1, k)
        pv(O1, Vc, S1, 0)
        slot()
        for k in range(10, 16):
            ex(S1, k)
    pv(O1, VF + 8 + 4, S1, 1)
    assert not pend, len(pend)
    stamp("attn")
    SCR = 98304
    a(f"s_xor_b32 {sT0}, {sW}, 4")
    a(f"s_mul_i32 {sT0}, {sT0}, 2304")
    a(f"s_add_u32 {sT0}, {sT0}, {SCR}")
    a(f"v_add_u32 v120, {sT0}, v{vL16}")
    a(f"v_lshl_add_u32 v121, v0, 2, {sT0}")
    a(f"s_mul_i32 {sT0}, {sW}, 2304")
    a(f"s_add_u32 {sT0}, {sT0}, {SCR}")
    a(f"v_add_u32 v122, {sT0}, v{vL16}")
    a(f"v_lshl_add_u32 v123, v0, 2, {sT0}")
    a(f"ds_write_b128 v120, {vr(O1,4)}")
    a(f"ds_write_b128 v120, {vr(O1+4,4)} offset:1024")
    a(f"ds_write_b32 v121, v{O1+8} offset:2048")
    a.wait(vm=("e", 3), lg0=True)
    a("s_barrier")
    a(f"ds_read_b128 {vr(S0,4)}, v122")
    a(f"ds_read_b128 {vr(S0+4,4)}, v122 offset:1024")
    a(f"ds_read_b32 v{S0+8}, v123 offset:2048")
    vWA = 128
    a("v_bfe_u32 v120, v0, 2, 2")
    a("v_lshrrev_b32 v121, 5, v0")
    a("v_lshl_add_u32 v121, v121, 2, v120")
    a("v_lshlrev_b32 v121, 7, v121")
    a("v_and_b32 v122, 1, v0")
    a("v_bfe_u32 v123, v0, 1, 1")
    a("v_lshl_or_b32 v122, v122, 1, v123")
    a("v_lshl_add_u32 v121, v122, 3, v121")
    a("v_and_b32 v120, 2, v120")
    a("v_bfe_u32 v122, v0, 4, 1")
    a("v_xor_b32 v120, v120, v122")
    a(f"v_xor_b32 v120, {sKQ}, v120")
    a("v_lshl_add_u32 v121, v120, 5, v121")
    a(f"s_lshl_b32 {sT0}, {sKQ}, 13")
    a(f"v_add_u32 v{vWA}, {sT0}, v121")
    a(f"v_xor_b32 v{vWA+1}, 64, v{vWA}")
    for k in range(2, 6):
        a(f"v_add_u32 v{vWA+k}, 0x10000, v{vWA+k-2}")
    a.wait(lg0=True)
    for k in range(9):
        a(f"v_add_f32 v{O0+k}, v{O0+k}, v{S0+k}")
    a(f"v_mul_f32 v120, 0, v{O0}")
    for k in range(1, 8):
        a(f"v_fmac_f32 v120, 0, v{O0+k}")
    a(f"v_add_f32 v120, v120, v{O0+8}")
    a(f"v_cmp_lt_f32 vcc, {fb(2.0**-60)}, v120")
    a(f"s_mov_b64 s[98:99], vcc")
    a(f"v_cmp_gt_f32 vcc, {fb(2.0**60)}, v120")
    a("s_and_b64 vcc, vcc, s[98:99]")
    a("s_cmp_eq_u64 vcc, -1")
    if o["force_slow"]:
        a("s_branch L_slow")
    else:
        a("s_cbranch_scc0 L_slow")
    a.label("L_slowret")
    snap_slow = a.snapshot()
    a(f"v_rcp_f32 v120, v{O0+8}")
    a(f"s_lshl_b32 {sT0}, {sQ0}, 5")
    a(f"s_add_u32 {sT0}, {sT0}, {sHEAD}")
    a(f"s_lshl_b32 {sOFLAG}, {sT0}, 2")
    a(f"s_add_u32 {sOFLAG}, {sOFLAG}, {F3}")
    a(f"s_lshl_b32 {sT0}, {sT0}, 10")
    a(f"s_add_u32 {sT0}, {sT0}, {OF}")
    for k in range(8):
        a(f"v_mul_f32 v{O0+k}, v{O0+k}, v120")
    cvt8(96, O0)
    a(f"buffer_store_dwordx4 v[96:99], v{vL16}, {WS}, {sT0} offen sc1", vm="ost")
    stamp("ostore")

    H0, H1, P0, P1, DW, OFR = 16, 32, 48, 64, 80, 208

    def d_reads(e, s, dst, tagk):
        sl = DSLOT[e]
        r = []
        for nb_ in range(2):
            for jj in range(2):
                r.append((f"ds_read_b64_tr_b16 {vr(dst+4*nb_+2*jj,2)}, v{vWA+2*(sl>>1)+nb_} offset:{(sl&1)*32768+s*2048+jj*1024}", (f"d{nb_}", tagk)))
        return r

    emit_reads(d_reads(0, 0, DW, 0))
    pend = []
    vF3 = 134
    a(f"v_and_b32 v{vF3}, 7, v0")
    a(f"s_lshl_b32 {sT0}, {sTBD}, 2")
    a(f"s_add_u32 {sT0}, {sT0}, {sKQ}")
    a(f"s_lshl_b32 {sT2}, {sT0}, 13")
    a(f"s_add_u32 {sT2}, {sT2}, {OF}")
    a(f"s_lshl_b32 {sT0}, {sT0}, 5")
    a(f"s_add_u32 {sT0}, {sT0}, {F3}")
    a(f"v_lshl_add_u32 v{vF3}, v{vF3}, 2, {sT0}")
    for g in range(28):
        e, s = g >> 2, g & 3
        wb = DW + 8 * (g & 1)
        if s == 3:
            vmw = {3: ("e", 4), 4: ("e", 5), 5: ("e", 6), 6: ("e", 8)}.get(e)
            if e == 2:
                a.wait(vm="ost")
                flag_store(120, sOFLAG)
            a.wait(vm=vmw, lg0=True)
            a("s_barrier")
            if e == 0:
                pend = wd_dmas(4) + wd_dmas(5)
            elif e <= 3:
                pend += wd_dmas(e + 5)
        if g == 25:
            a(f"buffer_load_dword v122, v{vF3}, {WS}, 0 offen sc1", vm="f3")
        nxt = d_reads((g + 1) >> 2, (g + 1) & 3, DW + 8 * ((g + 1) & 1), g + 1) if g < 27 else []
        if g == 0:
            a.wait(vm=("h", 27))
        for nb_ in range(2):
            a.wait(lg=(f"d{nb_}", g))
            acc = [H0, H1][nb_]
            mfma(acc, wb + 4 * nb_, HR + 4 * g, None if g == 0 else acc)
            emit_reads(nxt[2 * nb_:2 * nb_ + 2])
            if pend:
                pend.pop(0)()
    assert not pend
    stamp("down")
    poll(122, vF3, WS, "f3")
    stamp("f3ok")
    for k in range(8):
        if k == 4:
            a(f"s_add_u32 {sT2}, {sT2}, 4096")
        a(f"buffer_load_dwordx4 {vr(OFR+4*k,4)}, v{vL16}, {WS}, {sT2} offen offset:{(k%4)*1024} sc1", vm=("o", k))
    for k in range(8):
        if k and k % 2 == 0:
            a.wait(lg=("d1", 100 + k - 2))
        emit_reads(d_reads(7 + (k >> 2), k & 3, HR + 8 * k, 100 + k))
    a(f"v_sub_f32 v120, 1.0, v{vG}")
    for k in range(32):
        a(f"v_mul_f32 v{H0+k}, v{H0+k}, v120")
    RS = 98304
    a(f"s_and_b32 {sT0}, {sW}, 1")
    a(f"s_lshl_b32 {sT0}, {sT0}, 2")
    for oo in range(1, 4):
        a(f"s_xor_b32 {sT1}, {sKQ}, {oo}")
        a(f"s_add_u32 {sT1}, {sT1}, {sT0}")
        a(f"s_mul_i32 {sT1}, {sT1}, 6144")
        a(f"s_add_u32 {sT1}, {sT1}, {RS+(oo-1)*2048}")
        a(f"v_add_u32 v{134+oo}, {sT1}, v{vL16}")
    a(f"s_add_u32 {sT1}, {sKQ}, {sT0}")
    a(f"s_mul_i32 {sT1}, {sT1}, 6144")
    a(f"s_add_u32 {sT1}, {sT1}, {RS}")
    a(f"v_add_u32 v138, {sT1}, v{vL16}")
    a("v_and_b32 v139, 31, v0")
    a("v_lshrrev_b32 v140, 5, v0")
    a("v_lshlrev_b32 v140, 4, v140")
    a("v_lshl_add_u32 v139, v139, 10, v140")
    a(f"s_lshl_b32 {sT0}, {sTBD}, 15")
    a(f"s_lshl_b32 {sT1}, {sCT}, 7")
    a(f"s_add_u32 {sT0}, {sT0}, {sT1}")
    a(f"s_lshl_b32 {sT1}, {sKQ}, 5")
    a(f"s_add_u32 {sT0}, {sT0}, {sT1}")
    a.wait(lg0=True)
    for k in range(8):
        a.wait(vm=("o", k))
        for nb_ in range(2):
            acc = [P0, P1][nb_]
            mfma(acc, HR + 8 * k + 4 * nb_, OFR + 4 * k, None if k == 0 else acc)
    stamp("oproj")
    for oo in (1, 0, 2, 3):
        for k in range(8 * oo, 8 * oo + 8):
            a(f"v_fmac_f32 v{H0+k}, v{vG}, v{P0+k}")
        if oo:
            a(f"ds_write_b128 v{134+oo}, {vr(H0+8*oo,4)}")
            a(f"ds_write_b128 v{134+oo}, {vr(H0+8*oo+4,4)} offset:1024")
    a.wait(lg0=True)
    a("s_barrier")
    for k in range(6):
        a(f"ds_read_b128 {vr(P0+4*k,4)}, v138 offset:{k*1024}", lg=("rs", k))
    for oo in range(3):
        a.wait(lg=("rs", 2 * oo + 1))
        for k in range(8):
            a(f"v_add_f32 v{H0+k}, v{H0+k}, v{P0+8*oo+k}")
    cvt8(96, H0)
    a(f"buffer_store_dwordx4 v[96:99], v139, {OUT}, {sT0} offen")
    if diag:
        stamp("end")
        a.wait(vm0=True)
        stamp("endack")
        a(f"s_lshl_b32 {sT0}, s2, 3")
        a(f"s_add_u32 {sT0}, {sT0}, {sW}")
        a(f"s_lshl_b32 {sT0}, {sT0}, 8")
        a(f"s_add_u32 {sT0}, {sT0}, {DIAG}")
        a("v_lshlrev_b32 v120, 2, v0")
        a(f"buffer_store_dword v{vST}, v120, {WS}, {sT0} offen")
    if o["fixed"]:
        a.label("L_fix")
        a("s_memrealtime s[98:99]")
        a("s_waitcnt lgkmcnt(0)")
        a("s_sub_u32 s98, s98, s100")
        a(f"s_cmp_lt_u32 s98, {o['fixed']}")
        a("s_cbranch_scc1 L_fix")
    a.label("L_end")
    a("s_endpgm")

    a.label("L_slow")
    a.restore(snap_slow)
    a.fence()
    a(f"s_lshl_b32 {sT0}, {sCH}, 11")
    a(f"s_add_u32 {sT0}, {sT0}, 0x10000")
    a(f"v_subrev_u32 v120, {sT0}, v{vAK}")
    a(f"v_subrev_u32 v121, {sT0}, v{vAV}")
    a(f"s_sub_u32 {sT2}, {sKVB}, {sW1K}")
    a(f"s_mov_b32 {sT0}, {sT2}")
    a(f"s_mov_b32 {sCNT}, 64")
    a("v_mov_b32 v122, 0xff800000")
    a.label("L_slowA")
    a(f"buffer_load_dwordx4 {vr(KF,4)}, v120, {WS}, {sT0} offen sc1")
    a("s_waitcnt vmcnt(0)")
    mfma(S0, KF, Q0)
    a(f"s_add_u32 {sT0}, {sT0}, 2048")
    for k in range(8):
        a(f"v_max3_f32 v122, v122, v{S0+2*k}, v{S0+2*k+1}")
    a(f"s_sub_u32 {sCNT}, {sCNT}, 1")
    a(f"s_cmp_lg_u32 {sCNT}, 0")
    a("s_cbranch_scc1 L_slowA")
    a("v_mov_b32 v123, v122")
    a("v_permlane32_swap_b32 v123, v122")
    a("v_max_f32 v122, v122, v123")
    for k in range(16):
        a(f"v_sub_f32 v{O1+k}, 0, v122")
        a(f"v_mov_b32 v{O0+k}, 0")
    a(f"s_mov_b32 {sT0}, {sT2}")
    a(f"s_mov_b32 {sCNT}, 64")
    a.label("L_slowB")
    a(f"buffer_load_dwordx4 {vr(KF,4)}, v120, {WS}, {sT0} offen sc1")
    a(f"s_mov_b64 exec, {sMASK}")
    a(f"buffer_load_dwordx4 {vr(VF,4)}, v121, {WS}, {sT0} offen offset:1024 sc1")
    a(f"buffer_load_dwordx4 {vr(VF+4,4)}, v121, {WS}, {sT0} offen offset:1536 sc1")
    a("s_mov_b64 exec, -1")
    a("s_waitcnt vmcnt(0)")
    mfma(S0, KF, Q0, O1)
    a(f"s_add_u32 {sT0}, {sT0}, 2048")
    for k in range(16):
        ex(S0, k)
    pv(O0, VF, S0, 0)
    pv(O0, VF + 4, S0, 1)
    a(f"s_sub_u32 {sCNT}, {sCNT}, 1")
    a(f"s_cmp_lg_u32 {sCNT}, 0")
    a.fence()
    a("s_cbranch_scc1 L_slowB")
    a("s_branch L_slowret")
    return a


STAMPS = []

HEADER = open(__file__.rsplit("/", 1)[0] + "/header.txt").read() if "/" in __file__ else open("header.txt").read()


def build(path, diag=False, opts=None):
    a = gen(diag, opts)
    s = HEADER
    s += "; @launch grid=(256,1,1) block=(512,1,1) lds=163840\n"
    s += '.amdgcn_target "amdgcn-amd-amdhsa--gfx950"\n.text\n'
    s += f".globl {NAME}_kernel\n.p2align 8\n.type {NAME}_kernel,@function\n"
    s += a.text()
    s += f""".section .rodata,"a"
.p2align 6
.amdhsa_kernel {NAME}_kernel
  .amdhsa_next_free_vgpr 256
  .amdhsa_next_free_sgpr 102
  .amdhsa_accum_offset 256
  .amdhsa_group_segment_fixed_size 0
  .amdhsa_kernarg_size 88
  .amdhsa_user_sgpr_count 2
  .amdhsa_user_sgpr_kernarg_segment_ptr 1
  .amdhsa_system_sgpr_workgroup_id_x 1
.end_amdhsa_kernel
"""
    open(path, "w").write(s)
    return a


if __name__ == "__main__":
    import json
    a = build(f"cdna_kernels/{NAME}.s")
    print("pads:", len(a.pads))
    for p in a.pads:
        print("  ", p)
    build("diag.s", diag=True)
    json.dump(STAMPS, open("diag.json", "w"))
    build("slow.s", opts=dict(force_slow=True))
    build("fixed100.s", opts=dict(fixed=10000))
    build("fixed60.s", opts=dict(fixed=6000))
```

```python
import subprocess, sys, json
CL="clang"
def kern(name, body, iters, init=""):
    s=f'''.globl {name}
.p2align 8
.type {name},@function
{name}:
    s_load_dwordx4 s[4:7], s[0:1], 0
    v_lshrrev_b32 v1, 6, v0
    s_nop 1
    v_readfirstlane_b32 s20, v1
    s_waitcnt lgkmcnt(0)
    s_mov_b32 s8, s4
    s_mov_b32 s9, s5
    s_mov_b32 s10, 0x100000
    s_mov_b32 s11, 0x00020000
    s_mov_b32 s12, s6
    s_mov_b32 s13, s7
    s_mov_b32 s14, 0x1000000
    s_mov_b32 s15, 0x00020000
    v_lshlrev_b32 v2, 4, v0
    s_mov_b32 s22, 0
'''
    for i in range(4,256,4):
        s+=f"    buffer_load_dwordx4 v[{i}:{i+3}], v2, s[12:15], s22 offen\n    s_add_u32 s22, s22, 8192\n"
        if i%64==0: s+="    s_waitcnt vmcnt(0)\n"
    s+="    s_waitcnt vmcnt(0)\n"
    for i in range(8):
        s+=f"    ds_write_b128 v2, v[{128+4*i}:{131+4*i}] offset:{i*8192}\n"
    s+="    s_waitcnt lgkmcnt(0)\n"
    s+=init
    s+=f'''    s_mov_b32 s16, {iters}
    s_barrier
    s_memtime s[24:25]
    s_memrealtime s[26:27]
    s_waitcnt lgkmcnt(0)
.p2align 6
L_{name}:
{body}
    s_sub_u32 s16, s16, 1
    s_cmp_lg_u32 s16, 0
    s_cbranch_scc1 L_{name}
    s_barrier
    s_waitcnt lgkmcnt(0)
    s_memtime s[28:29]
    s_memrealtime s[30:31]
    s_waitcnt lgkmcnt(0)
    s_sub_u32 s28, s28, s24
    s_sub_u32 s30, s30, s26
    s_getreg_b32 s31, hwreg(HW_REG_XCC_ID)
    s_lshl_b32 s17, s2, 3
    s_add_u32 s17, s17, s20
    s_lshl_b32 s17, s17, 4
    v_mov_b32 v4, s28
    v_mov_b32 v5, s30
    v_mov_b32 v6, s31
    v_mov_b32 v7, 0
    v_mov_b32 v3, s17
    buffer_store_dwordx4 v[4:7], v3, s[8:11], 0 offen
    s_waitcnt vmcnt(0)
    s_endpgm
'''
    kd=f'''.amdhsa_kernel {name}
  .amdhsa_next_free_vgpr 256
  .amdhsa_next_free_sgpr 64
  .amdhsa_accum_offset 256
  .amdhsa_group_segment_fixed_size 0
  .amdhsa_kernarg_size 16
  .amdhsa_user_sgpr_count 2
  .amdhsa_user_sgpr_kernarg_segment_ptr 1
  .amdhsa_system_sgpr_workgroup_id_x 1
.end_amdhsa_kernel
'''
    md=f'''  - .name: {name}
    .symbol: {name}.kd
    .kernarg_segment_size: 16
    .kernarg_segment_align: 8
    .group_segment_fixed_size: 0
    .private_segment_fixed_size: 0
    .wavefront_size: 64
    .sgpr_count: 64
    .vgpr_count: 256
    .max_flat_workgroup_size: 1024
    .args:
      - {{.name: kernargs, .size: 16, .offset: 0, .value_kind: by_value}}
'''
    return s,kd,md
def build(K,out):
    t='.amdgcn_target "amdgcn-amd-amdhsa--gfx950"\n.text\n'; k='.section .rodata,"a"\n'; m=".amdgpu_metadata\n---\namdhsa.version: [1, 2]\namdhsa.kernels:\n"
    meta=[]
    for d in K:
        s,kd,md=kern(d["name"],d["body"],d["iters"],d.get("init","")); t+=s; k+=".p2align 6\n"+kd; m+=md
        meta.append(dict(name=d["name"],n=d["iters"]*d["per"],blk=d.get("blk",512)))
    m+="...\n.end_amdgpu_metadata\n"
    open(out+".s","w").write(t+k+m); json.dump(meta,open(out+".json","w"))
    r=subprocess.run([CL,"-x","assembler","-target","amdgcn-amd-amdhsa","-mcpu=gfx950",out+".s","-o",out+".co"],capture_output=True,text=True)
    print(r.stderr[:2000])
```

```python
from pw import build
K=[]
zero="".join(f"v_mov_b32 v{i}, 0\n" for i in range(16,80))
def mf(j):
    a=128+4*(j%16); b=192+4*((j*5)%16); d=16+16*(j%4)
    return f"v_mfma_f32_32x32x16_bf16 v[{d}:{d+15}], v[{a}:{a+3}], v[{b}:{b+3}], v[{d}:{d+15}]"
def rep(f,n): return "\n".join(f(i) for i in range(n))
for nm,cond in [("all","s_cmp_lt_u32 s2, 256"),("x1","s_and_b32 s34, s2, 7\ns_cmp_lt_u32 s34, 1"),("x2","s_and_b32 s34, s2, 7\ns_cmp_lt_u32 s34, 2"),("x4","s_and_b32 s34, s2, 7\ns_cmp_lt_u32 s34, 4"),
                ("x4alt","s_and_b32 s34, s2, 1\ns_cmp_lt_u32 s34, 1"),("half_each","s_cmp_lt_u32 s2, 128"),("eighth_each","s_cmp_lt_u32 s2, 32")]:
    body=f"{cond}\ns_cbranch_scc0 SK_{nm}\n"+rep(mf,64)+f"\nSK_{nm}:"
    K.append(dict(name=nm,body=body,iters=8,per=64,init=zero,blk=256))
build(K,"pw9")
```

```python
from pw import build
K=[]
init="v_and_b32 v3, 63, v0\nv_lshlrev_b32 v3, 4, v3\ns_lshl_b32 s21, s20, 10\ns_add_u32 s21, s21, 32768\ns_mov_b32 m0, s21\ns_lshl_b32 s22, s20, 15\n"
def body(fl,lds=True):
    out=[]
    for it in range(32):
        out.append(f"s_add_u32 s23, s22, {it*1024}")
        if lds: out.append(f"buffer_load_dwordx4 v3, s[12:15], s23 offen {fl} lds")
        else: out.append(f"buffer_load_dwordx4 v[{16+4*(it%8)}:{19+4*(it%8)}], v3, s[12:15], s23 offen {fl}")
        out.append("s_waitcnt vmcnt(6)")
    return "\n".join(out)
for nm,fl in (("plain",""),("sc1","sc1"),("nt","nt"),("sc0","sc0"),("sc0sc1","sc0 sc1"),("sc1nt","sc1 nt")):
    K.append(dict(name="lds_"+nm,body=body(fl),iters=8,per=32,init=init))
    K.append(dict(name="reg_"+nm,body=body(fl,False),iters=8,per=32,init=init))
zero="".join(f"v_mov_b32 v{i}, 0\n" for i in range(16,80))
def rep(f,n): return "\n".join(f(i) for i in range(n))
K.append(dict(name="exp_inplace_like",body=rep(lambda j:f"v_exp_f32 v{16+j%64}, v{128+(j*3)%64}",256),iters=8,per=64,blk=256))
K.append(dict(name="exp_legacy",body=rep(lambda j:f"v_exp_legacy_f32 v{16+j%64}, v{128+(j*3)%64}",256),iters=8,per=64,blk=256))
K.append(dict(name="exp_f16",body=rep(lambda j:f"v_exp_f16 v{16+j%64}, v{128+(j*3)%64}",256),iters=8,per=64,blk=256))
def mf(op):
    def f(j):
        a=128+4*(j%16); b=192+4*((j*5)%16); d=16+16*(j%2)
        return f"{op} v[{d}:{d+15}], v[{a}:{a+3}], v[{b}:{b+3}], 0"
    return f
K.append(dict(name="qk_bf16",body=rep(mf("v_mfma_f32_32x32x16_bf16"),64),iters=8,per=64,init=zero,blk=256))
K.append(dict(name="qk_f16",body=rep(mf("v_mfma_f32_32x32x16_f16"),64),iters=8,per=64,init=zero,blk=256))
def smf(j):
    a=128+4*(j%16); b=192+8*((j*5)%8); d=16+16*(j%2)
    return f"v_smfmac_f32_32x32x32_bf16 v[{d}:{d+15}], v[{a}:{a+3}], v[{b}:{b+7}], v3"
halfz="v_and_b32 v1, 16, v0\nv_cmp_eq_u32 vcc, 0, v1\ns_nop 1\n"+"".join(f"v_cndmask_b32 v{i}, 0, v{i}, vcc\n" for i in range(128,192))
lowz="".join(f"v_and_b32 v{i}, 0xffff0000, v{i}\n" for i in range(192,256))
K.append(dict(name="smf_half",body=rep(smf,64),iters=8,per=64,init=zero+"v_mov_b32 v3, 0xdddddddd\n"+halfz,blk=256))
K.append(dict(name="smf_half_lowz",body=rep(smf,64),iters=8,per=64,init=zero+"v_mov_b32 v3, 0xdddddddd\n"+halfz+lowz,blk=256))
halfz2="v_and_b32 v1, 1, v0\nv_cmp_eq_u32 vcc, 0, v1\ns_nop 1\n"+"".join(f"v_cndmask_b32 v{i}, 0, v{i}, vcc\n" for i in range(128,192))
K.append(dict(name="smf_oddrows0",body=rep(smf,64),iters=8,per=64,init=zero+"v_mov_b32 v3, 0xdddddddd\n"+halfz2,blk=256))
halfz3="v_and_b32 v1, 4, v0\nv_cmp_eq_u32 vcc, 0, v1\ns_nop 1\n"+"".join(f"v_cndmask_b32 v{i}, 0, v{i}, vcc\n" for i in range(128,192))
K.append(dict(name="smf_bit2rows0",body=rep(smf,64),iters=8,per=64,init=zero+"v_mov_b32 v3, 0xdddddddd\n"+halfz3,blk=256))
halfz4="v_and_b32 v1, 8, v0\nv_cmp_eq_u32 vcc, 0, v1\ns_nop 1\n"+"".join(f"v_cndmask_b32 v{i}, 0, v{i}, vcc\n" for i in range(128,192))
K.append(dict(name="smf_bit3rows0",body=rep(smf,64),iters=8,per=64,init=zero+"v_mov_b32 v3, 0xdddddddd\n"+halfz4,blk=256))
halfz5="v_and_b32 v1, 2, v0\nv_cmp_eq_u32 vcc, 0, v1\ns_nop 1\n"+"".join(f"v_cndmask_b32 v{i}, 0, v{i}, vcc\n" for i in range(128,192))
K.append(dict(name="smf_bit1rows0",body=rep(smf,64),iters=8,per=64,init=zero+"v_mov_b32 v3, 0xdddddddd\n"+halfz5,blk=256))
K.append(dict(name="smf_full",body=rep(smf,64),iters=8,per=64,init=zero+"v_mov_b32 v3, 0xdddddddd\n",blk=256))
allz="".join(f"v_mov_b32 v{i}, 0\n" for i in range(128,192))
K.append(dict(name="smf_A0",body=rep(smf,64),iters=8,per=64,init=zero+"v_mov_b32 v3, 0xdddddddd\n"+allz,blk=256))
build(K,"pw10")
```

```python
from pw import build
K=[]
def rep(f,n): return "\n".join(f(i) for i in range(n))
zero="".join(f"v_mov_b32 v{i}, 0\n" for i in range(16,80))
def ex(S,i): return f"v_exp_f32 v{S+i}, v{S+i}"
def qk(S,Kf,Q): return f"v_mfma_f32_32x32x16_bf16 v[{S}:{S+15}], v[{Kf}:{Kf+3}], v[{Q}:{Q+3}], 0"
def pv(O,Vf,S,m): return f"v_smfmac_f32_32x32x32_bf16 v[{O}:{O+15}], v[{Vf}:{Vf+3}], v[{S+8*m}:{S+8*m+7}], v3"
def step64(t, noqk=False, nopv=False, noexp=False):
    b=t&1; nb=b^1
    Kc,Kn=88+4*b,88+4*nb
    Vc=96+8*b; Vn=96+8*nb; Vp=Vn
    off=(t%16)*4096
    rdK=f"ds_read_b128 v[{Kn}:{Kn+3}], v2 offset:{off}"
    rdV0=f"ds_read_b128 v[{Vn}:{Vn+3}], v2 offset:{off+1024}"
    rdV1=f"ds_read_b128 v[{Vn+4}:{Vn+7}], v2 offset:{off+2048}"
    em="s_mov_b64 exec, s[40:41]"; ef="s_mov_b64 exec, -1"
    w="s_waitcnt lgkmcnt(0)"
    s=[]
    s+=[ex(16,0),ex(16,1), pv(64,Vp+4,32,1), rdK]
    s+=[ex(16,i) for i in range(2,5)]
    s+=[qk(32,Kc,84)]
    s+=[ex(16,i) for i in range(5,10)]
    s+=[pv(48,Vc,16,0), em, rdV0, rdV1, ef]
    s+=[ex(16,i) for i in range(10,16)]
    s+=[ex(32,0),ex(32,1), pv(48,Vc+4,16,1), w]
    s+=[ex(32,i) for i in range(2,5)]
    s+=[qk(16,Kn,80)]
    s+=[ex(32,i) for i in range(5,10)]
    s+=[pv(64,Vc,32,0)]
    s+=[ex(32,i) for i in range(10,16)]
    if nopv: s=[x if "smfmac" not in x else "s_nop 0" for x in s]
    return s
def init(mask,ones):
    s=zero+f"""v_and_b32 v2, 63, v0
v_lshlrev_b32 v2, 4, v2
v_mov_b32 v3, 0xdddddddd
s_mov_b32 s40, {mask}
s_mov_b32 s41, {mask}
s_mov_b32 s42, {ones}
s_mov_b32 s43, {ones}
"""
    for i in range(80,88): s+=f"v_subrev_u32 v{i}, 0x01000100, v{i}\n"
    s+="v_mov_b32 v1, 0x3f803f80\n"
    for i in range(96,112): s+=f"v_cndmask_b32 v{i}, 0, v1, s[42:43]\n"
    return s
for nm,mask,ones in [("lo_two","0x0000ffff","0x00110000"),("lo_one","0x0000ffff","0x00010000"),("lo_none","0x0000ffff","0"),("hi_two","0xffff0000","0x00000011"),
                     ("even_two","0x55555555","0x00000022"),("even_one","0x55555555","0x00000002"),("b1_two","0x33333333","0x00000044"),("b1_one","0x33333333","0x4"),("b3_two","0x00ff00ff","0x00001100"),("mid","0x00ffff00","0x11")]:
    K.append(dict(name=f"att_{nm}",body="\n".join("\n".join(step64(t)) for t in range(32)),iters=1,per=128,init=init(mask,ones)))
build(K,"pw2")
```

```python
from pw import build
K=[]
def rep(f,n): return "\n".join(f(i) for i in range(n))
zero="".join(f"v_mov_b32 v{i}, 0\n" for i in range(16,80))
def ex(S,i): return f"v_exp_f32 v{S+i}, v{S+i}"
def qk(S,Kf,Q): return f"v_mfma_f32_32x32x16_bf16 v[{S}:{S+15}], v[{Kf}:{Kf+3}], v[{Q}:{Q+3}], 0"
def pv(O,Vf,S,m): return f"v_smfmac_f32_32x32x32_bf16 v[{O}:{O+15}], v[{Vf}:{Vf+3}], v[{S+8*m}:{S+8*m+7}], v3"
def step64(t, noqk=False, nopv=False, noexp=False):
    b=t&1; nb=b^1
    Kc,Kn=88+4*b,88+4*nb
    Vc=96+8*b; Vn=96+8*nb; Vp=Vn
    off=(t%16)*4096
    rdK=f"ds_read_b128 v[{Kn}:{Kn+3}], v2 offset:{off}"
    rdV0=f"ds_read_b128 v[{Vn}:{Vn+3}], v2 offset:{off+1024}"
    rdV1=f"ds_read_b128 v[{Vn+4}:{Vn+7}], v2 offset:{off+2048}"
    em="s_mov_b64 exec, s[40:41]"; ef="s_mov_b64 exec, -1"
    w="s_waitcnt lgkmcnt(0)"
    s=[]
    s+=[ex(16,0),ex(16,1), pv(64,Vp+4,32,1), rdK]
    s+=[ex(16,i) for i in range(2,5)]
    s+=[qk(32,Kc,84)]
    s+=[ex(16,i) for i in range(5,10)]
    s+=[pv(48,Vc,16,0), em, rdV0, rdV1, ef]
    s+=[ex(16,i) for i in range(10,16)]
    s+=[ex(32,0),ex(32,1), pv(48,Vc+4,16,1), w]
    s+=[ex(32,i) for i in range(2,5)]
    s+=[qk(16,Kn,80)]
    s+=[ex(32,i) for i in range(5,10)]
    s+=[pv(64,Vc,32,0)]
    s+=[ex(32,i) for i in range(10,16)]
    if nopv: s=[x if "smfmac" not in x else "s_nop 0" for x in s]
    return s
def init(mask,ones):
    s=zero+f"""v_and_b32 v2, 63, v0
v_lshlrev_b32 v2, 4, v2
v_mov_b32 v3, 0xdddddddd
s_mov_b32 s40, {mask}
s_mov_b32 s41, {mask}
s_mov_b32 s42, {ones}
s_mov_b32 s43, {ones}
"""
    for i in range(80,88): s+=f"v_subrev_u32 v{i}, 0x01000100, v{i}\n"
    s+="v_mov_b32 v1, 0x3f803f80\n"
    for i in range(96,112): s+=f"v_cndmask_b32 v{i}, 0, v1, s[42:43]\n"
    return s
K.append(dict(name="base",body="\n".join("\n".join(step64(t)) for t in range(32)),iters=1,per=128,init=init("0x0000ffff","0x00110000")))
def q16(S,Kf,Q,leg):
    if leg: return f"v_mfma_f32_16x16x16_bf16 v[{S}:{S+3}], v[{Kf}:{Kf+1}], v[{Q}:{Q+1}], 0"
    return f"v_mfma_f32_16x16x32_bf16 v[{S}:{S+3}], v[{Kf}:{Kf+3}], v[{Q}:{Q+3}], 0"
def p16(O,Vf,S): return f"v_smfmac_f32_16x16x64_bf16 v[{O}:{O+3}], v[{Vf}:{Vf+3}], v[{S}:{S+7}], v3"
def step16(t,rs,leg=True):
    b=t&1; nb=b^1
    Kc,Kn=88+4*b,88+4*nb; Vc=96+4*b; Vn=96+4*nb
    off=(t%16)*4096
    s=[]
    for g in range(4):
        S=16+8*g; Sn=16+8*((g+2)%4); Sp=16+8*((g+3)%4); gp=(g+3)%4
        Kq=Kc if g<2 else Kn; Q=80+2*((g+2)%4)
        Vp=Vn if g==0 else Vc
        s+=[ex(S,0),ex(S,1),p16(48+4*gp,Vp,Sp)]
        if g==0: s.append(f"ds_read_b128 v[{Kn}:{Kn+3}], v2 offset:{off}")
        if g==1: s.append(f"ds_read_b128 v[{Vn}:{Vn+3}], v2 offset:{off+1024}")
        if g==2: s.append("s_waitcnt lgkmcnt(0)")
        s+=[ex(S,2),ex(S,3),q16(Sn,Kq,Q,leg),ex(S,4)]
        if rs=="smf": s.append(p16(64+4*gp,104,Sp))
        if rs=="pk": s+=[f"v_pk_add_f32 v[{64+2*gp}:{65+2*gp}], v[{64+2*gp}:{65+2*gp}], v[{Sp+2*k}:{Sp+2*k+1}]" for k in range(4)]
        if rs=="add": s+=[f"v_add_f32 v{64+2*gp+(k&1)}, v{64+2*gp+(k&1)}, v{Sp+k}" for k in range(8)]
        s+=[ex(S,5),q16(Sn+4,Kq+2 if leg else Kq,Q,leg),ex(S,6),ex(S,7)]
    return s
for rs in ("none","smf","pk","add"):
    K.append(dict(name=f"a16_{rs}",body="\n".join("\n".join(step16(t,rs)) for t in range(32)),iters=1,per=128,init=init("0x0000ffff","0x00010001")))
build(K,"pw2")
```

```python
from pw import build
K=[]
zero="".join(f"v_mov_b32 v{i}, 0\n" for i in range(16,80))
def m(d,a,b): return f"v_mfma_f32_16x16x32_bf16 v[{16+4*d}:{19+4*d}], v[{128+4*(a%16)}:{131+4*(a%16)}], v[{192+4*(b%16)}:{195+4*(b%16)}], v[{16+4*d}:{19+4*d}]"
def gen(order):
    out=[]
    for r in range(8):
        for p,th,s in order: out.append(m(2*p+th, 8*r+2*p+s+r, 4*r+2*s+th+r))
    return "\n".join(out)
O={}
O["chain2"]=[(p,th,s) for p in range(4) for th in range(2) for s in range(2)]
O["chain2_Ashare"]=[(p,th,s if th==0 else 1-s) for p in range(4) for th in range(2) for s in range(2)]
O["chain2_Bshare"]=[(p,th,s if p%2==0 else 1-s) for th in range(2) for p in range(4) for s in range(2)]
O["Bstat4"]=[(p,th,s) for s in range(2) for th in range(2) for p in range(4)]
O["Astat2"]=[(p,th,s) for p in range(4) for s in range(2) for th in range(2)]
O["snake"]=[(p,th if p%2==0 else 1-th,s) for s in range(2) for p in range(4) for th in range(2)]
for k,v in O.items(): K.append(dict(name=k,body=gen(v),iters=8,per=64,init=zero,blk=256))
build(K,"pw12")
```
